```python
import torch

def _softmax(x, axis=-1):
    return torch.softmax(x, dim=axis)
def _gelu(x):
    return torch.nn.functional.gelu(x, approximate="tanh")
def _silu(x):
    return torch.nn.functional.silu(x)
def _sigmoid(x):
    return torch.sigmoid(x)
def _layernorm(x, axis=-1, eps=1e-5):
    m = x.mean(dim=axis, keepdim=True)
    v = x.var(dim=axis, keepdim=True, unbiased=False)
    return (x - m) / torch.sqrt(v + eps)
def _scatter_add(tgt, idx, src, axis=0):
    return tgt.clone().index_add_(axis, idx, src)
def _segment_sum(src, seg, n):
    out = torch.zeros((n,) + src.shape[1:], dtype=src.dtype)
    return out.index_add_(0, seg, src)
def _pad(x, pw):
    flat = tuple(v for pair in reversed(pw) for v in pair)
    return torch.nn.functional.pad(x, flat)

kernel_name = 'gated_mix__softmax_full_mha__glu_gated_glu__prompt'

def setup_inputs():

    _w = (lambda a: (lambda t: t.to(torch.bfloat16) if t.is_floating_point() else t)(torch.as_tensor(a)))
    def _A_setup():
        B, S, D = 1, 2048, 640
        return {
            "x": _w((lambda *s: torch.randn(*s, dtype=torch.bfloat16) * 0.05)(B, S, D)),
            "wqkv": _w((lambda *s: torch.randn(*s, dtype=torch.bfloat16) * 0.8)(D, 3 * D)),
            "wo": _w((lambda *s: torch.randn(*s, dtype=torch.bfloat16) * 0.1)(D, D)),
        }
    _A_in = _A_setup()

    def _B_setup():
        B, S, D, F = 1, 2048, 640, 1728
        return {
            "x": _w((lambda *s: torch.randn(*s, dtype=torch.bfloat16) * 0.05)(B, S, D)),
            "w_gate": _w((lambda *s: torch.randn(*s, dtype=torch.bfloat16) * 0.8)(D, F)),
            "w_up": _w((lambda *s: torch.randn(*s, dtype=torch.bfloat16) * 0.05)(D, F)),
            "w_down": _w((lambda *s: torch.randn(*s, dtype=torch.bfloat16) * 0.05)(F, D)),
        }
    _B_in = _B_setup()

    return {
        "A_x": _A_in["x"],
        "A_wqkv": _A_in["wqkv"],
        "A_wo": _A_in["wo"],
        "B_x": _B_in["x"],
        "B_w_gate": _B_in["w_gate"],
        "B_w_up": _B_in["w_up"],
        "B_w_down": _B_in["w_down"],
        "gate_w": _w((lambda *s: torch.randn(*s, dtype=torch.bfloat16) * 0.05)(640) * 16.0),
    }

def reference(A_x, A_wqkv, A_wo, B_x, B_w_gate, B_w_up, B_w_down, gate_w):
    def _A_ref(x, wqkv, wo):
        B, S, D = x.shape
        H = 32; Dh = D // H
        qkv = (lambda x, *d: x.permute(*d))((x @ wqkv).reshape(B, S, 3, H, Dh), 2, 0, 3, 1, 4)
        q, k, v = qkv[0], qkv[1], qkv[2]
        scale = Dh ** -0.5
        scores = torch.einsum("bhqd,bhkd->bhqk", q, k) * scale
        p = _softmax(scores, axis=-1)
        o = torch.einsum("bhqk,bhkd->bhqd", p, v)
        return (lambda x, *d: x.permute(*d))(o, 0, 2, 1, 3).reshape(B, S, D) @ wo

    def _B_ref(x, w_gate, w_up, w_down):
        g = torch.einsum("bsd,df->bsf", x, w_gate)
        u = torch.einsum("bsd,df->bsf", x, w_up)
        h = _sigmoid(g) * u
        return torch.einsum("bsf,fd->bsd", h, w_down)

    x = A_x
    g = _sigmoid((x * gate_w).sum(-1, keepdims=True))
    a = _A_ref(x, A_wqkv, A_wo)
    b = _B_ref(x, B_w_gate, B_w_up, B_w_down)
    return g * a + (1 - g) * b
```

```python
import re, sys

def v(i): return f"v{i}"
def s(i): return f"s{i}"
def vr(i, n): return f"v{i}" if n == 1 else f"v[{i}:{i+n-1}]"
def sr(i, n): return f"s{i}" if n == 1 else f"s[{i}:{i+n-1}]"

class Kern:
    def __init__(self, name, vgpr=256, sgpr=102, accum=None):
        self.name = name; self.lines = []; self.vgpr = vgpr; self.sgpr = sgpr
        self.accum = accum or ((vgpr + 3) // 4 * 4)
        self.nlab = 0
    def __call__(self, text):
        for l in text.split("\n"):
            l = l.strip()
            if l: self.lines.append(l)
    def lab(self, base):
        self.nlab += 1
        return f"L_{self.name[:-7]}_{base}_{self.nlab}"
    def label(self, l): self.lines.append(l + ":")
    def text(self):
        out = [f".globl {self.name}", ".p2align 8", f".type {self.name},@function", f"{self.name}:"]
        for l in self.lines:
            out.append(l if l.endswith(":") or l.startswith(".") else "    " + l)
        return "\n".join(out) + "\n"
    def desc(self):
        return f""".p2align 6
.amdhsa_kernel {self.name}
  .amdhsa_next_free_vgpr {self.vgpr}
  .amdhsa_next_free_sgpr {self.sgpr}
  .amdhsa_accum_offset {self.accum}
  .amdhsa_group_segment_fixed_size 0
  .amdhsa_kernarg_size 88
  .amdhsa_user_sgpr_count 2
  .amdhsa_user_sgpr_kernarg_segment_ptr 1
  .amdhsa_system_sgpr_workgroup_id_x 1
.end_amdhsa_kernel
"""

REG = re.compile(r"\b([vsa])\[(\d+):(\d+)\]|\b([vsa])(\d+)\b|\b(vcc|exec|m0|vcc_lo|vcc_hi|exec_lo|exec_hi)\b")
TRANS = ("v_exp_", "v_log_", "v_rcp_", "v_rsq_", "v_sqrt_", "v_sin_", "v_cos_")

def regs_of(op):
    r = []
    for m in REG.finditer(op):
        if m.group(1): r += [(m.group(1), i) for i in range(int(m.group(2)), int(m.group(3)) + 1)]
        elif m.group(4): r.append((m.group(4), int(m.group(5))))
        else:
            n = m.group(6)
            if n.startswith("vcc"): r.append(("x", "vcc"))
            elif n.startswith("exec"): r.append(("x", "exec"))
            else: r.append(("x", "m0"))
    return r

class I:
    pass

def parse(line):
    line = line.split(";")[0].strip()
    i = I(); i.text = line
    parts = line.split(None, 1)
    i.op = parts[0]
    rest = parts[1] if len(parts) > 1 else ""
    ops = [o.strip() for o in re.split(r",(?![^\[]*\])", rest)] if rest else []
    i.ops = ops
    op = i.op
    i.defs = []; i.uses = []; i.cls = "other"; i.passes = 0; i.srcc = []; i.ab = []
    R = [regs_of(o) for o in ops]
    if op.startswith("v_mfma") or op.startswith("v_smfmac"):
        i.cls = "mfma"
        i.passes = 8 if "32x32" in op else 4
        i.defs = R[0]; i.ab = R[1] + R[2]
        if op.startswith("v_smfmac"):
            i.srcc = R[0]; i.ab += R[3]
        else:
            i.srcc = R[3]
        i.uses = i.ab + i.srcc
    elif op.startswith("v_"):
        i.cls = "valu"
        i.trans = op.startswith(TRANS)
        if op.startswith("v_cmp"):
            i.defs = R[0]; i.uses = sum(R[1:], [])
        elif op.startswith(("v_add_co", "v_sub_co", "v_addc_co", "v_subb_co")):
            i.defs = R[0] + R[1]; i.uses = sum(R[2:], [])
        elif op.startswith("v_permlane") and "swap" in op:
            i.defs = R[0] + R[1]; i.uses = R[0] + R[1]
        elif op.startswith(("v_fmac", "v_pk_fmac", "v_writelane")):
            i.defs = R[0]; i.uses = sum(R, [])
        elif op.startswith("v_nop"):
            pass
        else:
            i.defs = R[0]; i.uses = sum(R[1:], [])
            if "UNUSED_PRESERVE" in line or "dpp" in op or "row_" in line or "quad_perm" in line: i.uses += R[0]
        i.dpp = ("dpp" in op) or ("row_" in line) or ("quad_perm" in line)
    elif op.startswith(("buffer_", "global_")):
        i.cls = "vmem"
        lds = " lds" in line or "_lds_" in op
        i.lds = lds
        if "load" in op and not lds:
            i.defs = R[0]; i.uses = sum(R[1:], [])
            if "d16" in op: i.uses += R[0]
        elif "load" in op:
            i.uses = sum(R, []) + [("x", "m0")]
        elif "store" in op:
            i.uses = sum(R, [])
            i.data = R[0] if op.startswith("buffer_") else R[1]
        elif "atomic" in op:
            ret = " sc0" in line
            if op.startswith("buffer_"):
                i.uses = sum(R, []); i.defs = R[0] if ret else []
            else:
                if ret: i.defs = R[0]; i.uses = sum(R[1:], [])
                else: i.uses = sum(R, [])
        else:
            pass
    elif op.startswith("ds_"):
        i.cls = "ds"
        if op.startswith(("ds_read", "ds_bpermute", "ds_permute", "ds_swizzle")) or "_rtn" in op:
            i.defs = R[0]; i.uses = sum(R[1:], [])
        else:
            i.uses = sum(R, [])
    elif op.startswith("s_load") or op.startswith("s_buffer_load") or op in ("s_memtime", "s_memrealtime"):
        i.cls = "smem"; i.defs = R[0]; i.uses = sum(R[1:], [])
    elif op.startswith("s_"):
        i.cls = "salu"
        if op.startswith(("s_cmp", "s_bitcmp")): i.uses = sum(R, [])
        elif op.startswith(("s_waitcnt", "s_nop", "s_barrier", "s_branch", "s_cbranch", "s_endpgm", "s_setprio", "s_sleep", "s_setpc")):
            i.uses = sum(R, []) if op.startswith("s_setpc") else []
        elif "saveexec" in op:
            i.defs = R[0] + [("x", "exec")]; i.uses = sum(R[1:], []) + [("x", "exec")]
        else:
            i.defs = R[0] if R else []; i.uses = sum(R[1:], [])
            if op.startswith(("s_addk", "s_mulk", "s_cmov")): i.uses += R[0]
    return i

def ov(a, b):
    return bool(set(a) & set(b))

def need(p, c):
    n = 0
    pd = p.defs
    if p.cls == "valu":
        vd = [r for r in pd if r[0] in "va"]
        sd = [r for r in pd if r[0] == "s" or r == ("x", "vcc")]
        if c.cls == "mfma" and ov(vd, c.uses): n = max(n, 2)
        if c.cls == "valu":
            if getattr(p, "trans", False) and not getattr(c, "trans", False) and ov(vd, c.uses): n = max(n, 1)
            if c.op.startswith(("v_readlane", "v_readfirstlane")) and ov(vd, c.uses): n = max(n, 1)
            if c.op.startswith("v_permlane") and ov(vd, c.uses): n = max(n, 2)
            if getattr(c, "dpp", False) and ov(vd, c.uses): n = max(n, 2)
            if ov(sd, c.uses): n = max(n, 4 if c.op.startswith(("v_readlane", "v_writelane")) else 2)
            if "sdwa" in p.op and ov(vd, c.uses + c.defs): n = max(n, 1)
        if c.cls == "vmem" and ov(sd, c.uses): n = max(n, 5)
        if c.cls in ("salu", "smem") and ov(sd, c.uses): n = max(n, 1)
        if getattr(p, "trans", False) and c.cls in ("vmem", "ds") and ov(vd, c.uses): n = max(n, 1)
    if p.cls == "mfma":
        big = 12 if p.passes == 8 else 8
        if c.cls in ("valu", "vmem", "ds") and ov(pd, c.uses + c.defs): n = max(n, big)
        if c.cls == "mfma":
            if ov(pd, c.ab): n = max(n, big)
            if ov(pd, c.srcc) and not (pd == c.srcc and p.passes == c.passes): n = max(n, big - 2)
            if ov(pd, c.defs) and not ov(pd, c.srcc) and not (pd == c.defs and p.passes == c.passes): n = max(n, big - 2)
        if c.cls == "valu" and ov(p.srcc, c.defs): n = max(n, 7 if p.passes == 8 else 3)
    if p.cls == "salu" and ("x", "m0") in pd and c.cls == "vmem" and getattr(c, "lds", False): n = max(n, 1)
    if p.cls == "vmem" and "store" in p.op and ("x3" in p.op or "x4" in p.op):
        if ov(p.data, c.defs): n = max(n, 2 if c.cls == "valu" else 1)
    return n

def check(k, maxvisit=2, verbose=True):
    ins = []; labels = {}
    for l in k.lines:
        if l.endswith(":"): labels[l[:-1]] = len(ins)
        elif l.startswith(".") or l.startswith(";"): continue
        else: ins.append(parse(l))
    errs = set()
    seen = set()
    sys.setrecursionlimit(100000)
    stack = [(0, (), (), (), {})]
    steps = 0
    while stack:
        pc, win, vm, lg, visits = stack.pop()
        win = list(win); vm = list(vm); lg = list(lg); visits = dict(visits)
        while pc < len(ins):
            steps += 1
            if steps > 3000000:
                print("checker: too many steps"); return errs
            c = ins[pc]
            dist = 0
            for (ppc, w) in reversed(win):
                p = ins[ppc]
                nd = need(p, c)
                if nd > dist:
                    errs.add((pc, f"HAZARD need {nd} have {dist}: [{ppc}] {p.text}  ->  [{pc}] {c.text}"))
                dist += w
                if dist >= 20: break
            touch = set(c.uses) | set(c.defs)
            for q, nm in ((vm, "vm"), (lg, "lgkm")):
                for (ppc, d) in q:
                    if d & touch and not (c.cls == ins[ppc].cls and c.cls in ("vmem", "ds", "smem") and not (d & set(c.uses)) ):
                        errs.add((pc, f"WAIT {nm}: [{ppc}] {ins[ppc].text}  ->  [{pc}] {c.text}"))
            if c.cls == "vmem": vm.append((pc, frozenset(c.defs)))
            elif c.cls == "ds": lg.append((pc, frozenset(c.defs)))
            elif c.cls == "smem": lg.append((pc, frozenset(c.defs)))
            if c.op == "s_waitcnt":
                m = re.search(r"vmcnt\((\d+)\)", c.text)
                if m:
                    n = int(m.group(1)); vm = vm[len(vm) - n:] if n < len(vm) else vm
                    if n == 0: vm = []
                m = re.search(r"lgkmcnt\((\d+)\)", c.text)
                if m:
                    n = int(m.group(1))
                    if n > 0 and any(ins[p].cls == "smem" for p, _ in lg):
                        pass
                    else:
                        lg = lg[len(lg) - n:] if n < len(lg) else lg
                        if n == 0: lg = []
            if len(lg) > 15 + 8: lg = lg[-23:]
            if len(vm) > 80: vm = vm[-80:]
            w = 1
            if c.op == "s_nop": w = int(c.ops[0], 0) + 1
            win.append((pc, w)); win = win[-20:]
            if c.op == "s_endpgm": break
            if c.op == "s_branch" or c.op.startswith("s_cbranch"):
                t = labels[c.ops[0]]
                cnt = visits.get(pc, 0)
                key = (pc, tuple(p for p, _ in win[-12:]), tuple(p for p, d in vm if d), tuple(p for p, d in lg if d), len(vm), len(lg))
                if key in seen: break
                seen.add(key)
                if c.op == "s_branch":
                    if cnt >= maxvisit: break
                    visits[pc] = cnt + 1; pc = t; continue
                if cnt < maxvisit:
                    nv = dict(visits); nv[pc] = cnt + 1
                    stack.append((t, tuple(win), tuple(vm), tuple(lg), nv))
            pc += 1
    if verbose:
        for e in sorted(errs)[:12]: print(k.name, e[1])
    return errs
```

```python
from common import *

TS = 2592
CH = 8 * TS

def k2_attn(name="k2_kernel", force_slow=False):
    k = Kern(name, vgpr=144, sgpr=64)
    end = k.lab("end")
    WS = 8
    O = 16; S = [32, 48, 64, 80]; Q16 = 96; Q4 = 100; IDX = 102
    sets = [dict(K16=104, K4=108, V0=112, V1=116), dict(K16=120, K4=124, V0=128, V1=132)]
    KT16, KT4 = 136, 140
    aK16, aK4, aV0, aV1, gL = 4, 5, 6, 7, 8
    ws = sr(WS, 4)
    k(f"s_cmp_ge_u32 s2, 256\ns_cbranch_scc1 {end}")
    load_srds(k, [("ws", WS)])
    k("""v_lshrrev_b32 v1, 6, v0
    v_and_b32 v0, 63, v0
    v_readfirstlane_b32 s6, v1
    s_and_b32 s4, s2, 7
    s_lshl_b32 s4, s4, 2
    s_lshr_b32 s5, s2, 6
    s_add_u32 s4, s4, s5
    s_lshr_b32 s5, s2, 3
    s_and_b32 s5, s5, 7
    s_lshl_b32 s5, s5, 3
    s_add_u32 s5, s5, s6""")
    k(f"v_lshlrev_b32 v{gL}, 4, v0\nv_and_b32 v1, 31, v0\nv_lshrrev_b32 v2, 5, v0")
    k(f"s_mul_i32 s12, s4, {64*2560}\ns_add_u32 s12, s12, {WS_KV}")
    k(f"s_lshl_b32 s13, s4, 6\ns_add_u32 s13, s13, s5\ns_mul_i32 s13, s13, 1280\ns_add_u32 s13, s13, {WS_QF}")
    k(f"s_mul_i32 s14, s6, 2560\ns_add_u32 s14, s14, s12")
    k(f"s_mul_i32 s15, s6, {TS}")
    k(f"s_add_u32 s16, s12, {61*2560}\ns_add_u32 s17, s12, {62*2560}\ns_add_u32 s18, s12, {63*2560}")
    k("s_mov_b32 s20, 0xffffffff\ns_mov_b32 s21, 0\ns_mov_b32 s22, 0x000fffff\ns_mov_b32 s23, 0x000fffff")
    k("s_mov_b32 s24, 0x3f803f80\ns_mov_b32 s25, 0x00003f80")
    k(f"v_mov_b32 v{Q4}, 0\nv_mov_b32 v{Q4+1}, 0")
    for r in (sets[0]['K4'], sets[1]['K4'], KT4):
        k(f"v_mov_b32 v{r}, s24\nv_mov_b32 v{r+1}, s25")
    for i in range(4): k(f"v_mov_b32 v{sets[0]['V0']+i}, s24")
    k(f"v_lshlrev_b32 v9, 3, v1")
    k(f"v_mul_u32_u24 v10, 20, v2\nv_add_u32 v10, v10, v1\nv_lshlrev_b32 v10, 4, v10")
    k("s_waitcnt lgkmcnt(0)")
    k(f"buffer_load_dwordx4 {vr(Q16,4)}, v{gL}, {ws}, s13 offen")
    k(f"buffer_load_dwordx4 {vr(sets[1]['K16'],4)}, v{gL}, {ws}, s16 offen")
    k("s_mov_b64 exec, s[20:21]")
    k(f"buffer_load_dwordx2 {vr(Q4,2)}, v9, {ws}, s13 offen offset:1024")
    k(f"buffer_load_dwordx2 {vr(sets[1]['K4'],2)}, v9, {ws}, s16 offen offset:2304")
    k(f"buffer_load_dwordx2 {vr(KT4,2)}, v9, {ws}, s17 offen offset:2304")
    k(f"buffer_load_dwordx2 {vr(sets[0]['K4'],2)}, v9, {ws}, s18 offen offset:2304")
    k("s_mov_b64 exec, s[22:23]")
    k(f"buffer_load_dwordx4 {vr(sets[0]['V0'],4)}, v10, {ws}, s18 offen offset:1024")
    k("s_mov_b64 exec, -1")
    k(f"buffer_load_dwordx4 {vr(KT16,4)}, v{gL}, {ws}, s17 offen")
    k(f"buffer_load_dwordx4 {vr(sets[0]['K16'],4)}, v{gL}, {ws}, s18 offen")
    def dma(m0expr):
        k(m0expr)
        k("s_nop 0")
        k(f"buffer_load_dwordx4 v{gL}, {ws}, s14 offen lds")
        k(f"buffer_load_dwordx4 v{gL}, {ws}, s14 offen offset:1024 lds")
        k("s_mov_b64 exec, s[20:21]")
        k(f"buffer_load_dwordx4 v{gL}, {ws}, s14 offen offset:2048 lds")
        k("s_mov_b64 exec, -1")
    dma("s_mov_b32 m0, s15")
    k(f"s_add_u32 s14, s14, {8*2560}")
    dma(f"s_add_u32 m0, s15, {CH}")
    k(f"s_add_u32 s14, s14, {8*2560}")
    k(f"v_mul_u32_u24 v11, {TS}, v0\nv_mov_b32 v12, s24\nv_mov_b32 v13, s24\nv_mov_b32 v14, s24\nv_mov_b32 v15, s24")
    k("s_mov_b64 exec, 0xffffff")
    k("ds_write_b128 v11, v[12:15] offset:2560")
    k("v_mov_b32 v13, s25")
    k("ds_write_b64 v11, v[12:13] offset:2576")
    k("s_mov_b64 exec, -1")
    k(f"v_mov_b32 v{aK16}, v{gL}")
    k(f"v_add_u32 v{aK4}, 2304, v9\nv_mov_b32 v11, 2576\nv_cmp_eq_u32 vcc, 0, v2\ns_nop 1\nv_cndmask_b32 v{aK4}, v11, v{aK4}, vcc")
    k(f"v_add_u32 v{aV0}, 1024, v10\nv_add_u32 v{aV1}, 1664, v10\nv_mov_b32 v11, 2560\nv_cmp_gt_u32 vcc, 20, v1\ns_nop 1")
    k(f"v_cndmask_b32 v{aV0}, v11, v{aV0}, vcc\nv_cndmask_b32 v{aV1}, v11, v{aV1}, vcc")
    k(f"v_mov_b32 v{IDX}, 0xdddddddd")
    for i in range(16): k(f"v_mov_b32 v{O+i}, 0")
    for i in range(8): k(f"v_mov_b32 v{S[3]+8+i}, 0")
    for i in range(4): k(f"v_mov_b32 v{sets[0]['V1']+i}, 0")
    def qk(sb, k16, k4):
        k(f"v_mfma_f32_32x32x16_bf16 {vr(sb,16)}, {vr(k16,4)}, {vr(Q16,4)}, 0")
        k(f"v_mfma_f32_32x32x8_bf16 {vr(sb,16)}, {vr(k4,2)}, {vr(Q4,2)}, {vr(sb,16)}")
    def rowmax(sb, dst, first):
        if first:
            k(f"v_max3_f32 v{dst}, v{sb}, v{sb+1}, v{sb+2}")
            rest = list(range(3, 16)) + [0]
        else:
            rest = list(range(16))
        for i in range(0, len(rest), 2):
            k(f"v_max3_f32 v{dst}, v{dst}, v{sb+rest[i]}, v{sb+rest[i+1]}")
    def setpad():
        k("v_mov_b32 v12, v11\ns_nop 1\nv_permlane32_swap_b32 v11, v12\ns_nop 1\nv_max_f32 v11, v11, v12")
        k("""v_xor_b32 v11, 0x80000000, v11
        v_and_b32 v12, 0xffff0000, v11
        v_sub_f32 v13, v11, v12
        v_and_b32 v14, 0xffff0000, v13
        v_sub_f32 v13, v13, v14
        v_lshrrev_b32 v12, 16, v12
        v_or_b32 v12, v12, v14
        v_lshrrev_b32 v13, 16, v13
        v_cmp_eq_u32 vcc, 0, v2
        s_nop 1""")
        k(f"v_cndmask_b32 v{Q4}, v12, v{Q4}, vcc\nv_cndmask_b32 v{Q4+1}, v13, v{Q4+1}, vcc\ns_nop 1")
    k("s_waitcnt vmcnt(11)")
    qk(S[0], sets[1]['K16'], sets[1]['K4'])
    k("s_nop 11")
    rowmax(S[0], 11, True)
    setpad()
    k("s_waitcnt vmcnt(6)")
    qk(S[0], sets[1]['K16'], sets[1]['K4'])
    qk(S[1], KT16, KT4)
    k("s_mov_b32 s26, 0")
    k(f"s_mov_b32 s27, {2*CH}")
    k("s_mov_b32 s28, 0")
    k("s_nop 7")
    loop = k.lab("loop")
    k(".p2align 6")
    k.label(loop)
    for p in range(8):
        cur, nxt = sets[p & 1], sets[(p + 1) & 1]
        sb = S[p % 4]; sprev = S[(p - 1) % 4]; snew = S[(p + 2) % 4]
        if p == 0:
            for a in (aK16, aK4, aV0, aV1): k(f"v_add_u32 v{a}, s28, v{a}")
            k("s_waitcnt vmcnt(3) lgkmcnt(0)\ns_barrier")
        else:
            k("s_waitcnt lgkmcnt(0)")
        k(f"ds_read_b128 {vr(nxt['V1'],4)}, v{aV1} offset:{p*TS}")
        k(f"ds_read_b128 {vr(nxt['K16'],4)}, v{aK16} offset:{p*TS}")
        k(f"ds_read_b64 {vr(nxt['K4'],2)}, v{aK4} offset:{p*TS}")
        k(f"ds_read_b128 {vr(nxt['V0'],4)}, v{aV0} offset:{p*TS}")
        if p == 0:
            dma("s_add_u32 m0, s15, s27")
        if p == 1:
            k(f"""s_add_u32 s14, s14, {8*2560}
            s_cmp_eq_u32 s26, 5
            s_cselect_b32 s29, {64*2560}, 0
            s_sub_u32 s14, s14, s29
            s_mov_b32 s28, {CH}
            s_cmp_eq_u32 s27, s28
            s_cselect_b32 s28, {(-2*CH) & 0xffffffff}, s28
            s_add_u32 s27, s27, {CH}
            s_cmp_eq_u32 s27, {3*CH}
            s_cselect_b32 s27, 0, s27
            s_add_u32 s26, s26, 1""")
        e = lambda i: k(f"v_exp_f32 v{sb+i}, v{sb+i}")
        e(0); e(1)
        k(f"v_smfmac_f32_32x32x32_bf16 {vr(O,16)}, {vr(cur['V1'],4)}, {vr(sprev+8,8)}, v{IDX}")
        for i in range(2, 6): e(i)
        k(f"v_mfma_f32_32x32x16_bf16 {vr(snew,16)}, {vr(cur['K16'],4)}, {vr(Q16,4)}, 0")
        for i in range(6, 10): e(i)
        k(f"v_mfma_f32_32x32x8_bf16 {vr(snew,16)}, {vr(cur['K4'],2)}, {vr(Q4,2)}, {vr(snew,16)}")
        for i in range(10, 14): e(i)
        k(f"v_smfmac_f32_32x32x32_bf16 {vr(O,16)}, {vr(cur['V0'],4)}, {vr(sb,8)}, v{IDX}")
        e(14); e(15)
    k(f"s_cmp_lg_u32 s26, 8\ns_cbranch_scc1 {loop}")
    k("s_waitcnt lgkmcnt(0)\ns_nop 0")
    k(f"v_smfmac_f32_32x32x32_bf16 {vr(O,16)}, {vr(sets[0]['V1'],4)}, {vr(S[3]+8,8)}, v{IDX}")
    k("s_mov_b32 s30, 0x5f800000\ns_nop 10")
    norm = k.lab("norm"); slow = k.lab("slow")
    def getl():
        k(f"v_mov_b32 v11, v{O+8}\nv_mov_b32 v12, v{O+8}\ns_nop 1\nv_permlane32_swap_b32 v11, v12\ns_nop 1")
    getl()
    if force_slow:
        k(f"s_branch {slow}")
    k(f"v_cmp_nle_f32 vcc, v12, s30\ns_nop 1\ns_cmp_lg_u64 vcc, 0\ns_cbranch_scc1 {slow}")
    k.label(norm)
    k("v_rcp_f32 v12, v12")
    k(f"s_mul_i32 s13, s5, 40\ns_add_u32 s16, s13, s4\ns_lshl_b32 s16, s16, 10\ns_add_u32 s16, s16, {WS_OF}")
    k(f"s_lshr_b32 s17, s4, 2\ns_add_u32 s17, s17, s13\ns_add_u32 s17, s17, 32\ns_lshl_b32 s17, s17, 10\ns_add_u32 s17, s17, {WS_OF}")
    k("s_and_b32 s18, s4, 2\ns_lshl_b32 s18, s18, 8\ns_add_u32 s17, s17, s18\ns_and_b32 s18, s4, 1\ns_lshl_b32 s18, s18, 3\ns_add_u32 s17, s17, s18")
    for i in range(12): k(f"v_mul_f32 v{O+i}, v12, v{O+i}")
    for i in range(6): k(f"v_cvt_pk_bf16_f32 v{32+i}, v{O+2*i}, v{O+2*i+1}")
    k(f"buffer_store_dwordx4 v[32:35], v{gL}, {ws}, s16 offen")
    k("s_mov_b64 exec, s[20:21]")
    k(f"buffer_store_dwordx2 v[36:37], v{gL}, {ws}, s17 offen")
    k.label(end)
    k("s_endpgm")
    k.label(slow)
    st = sets[0]
    k("s_waitcnt vmcnt(0)")
    k(f"v_cmp_eq_u32 vcc, 0, v2\nv_mov_b32 v13, 0\ns_nop 1\nv_cndmask_b32 v{Q4}, v13, v{Q4}, vcc\nv_cndmask_b32 v{Q4+1}, v13, v{Q4+1}, vcc")
    k(f"v_mov_b32 v{st['K4']}, s24\nv_mov_b32 v{st['K4']+1}, s25")
    for i in range(4): k(f"v_mov_b32 v{st['V0']+i}, s24\nv_mov_b32 v{st['V1']+i}, s24")
    k("v_mov_b32 v11, 0xff800000\ns_mov_b32 s26, 0")
    def ldk():
        k(f"s_sub_u32 s16, s26, 3\ns_and_b32 s16, s16, 63\ns_mul_i32 s16, s16, 2560\ns_add_u32 s16, s16, s12")
        k(f"buffer_load_dwordx4 {vr(st['K16'],4)}, v{gL}, {ws}, s16 offen")
        k("s_mov_b64 exec, s[20:21]")
        k(f"buffer_load_dwordx2 {vr(st['K4'],2)}, v9, {ws}, s16 offen offset:2304")
        k("s_mov_b64 exec, -1")
    l1 = k.lab("p1"); k.label(l1)
    ldk()
    k("s_waitcnt vmcnt(0)")
    qk(S[0], st['K16'], st['K4'])
    k("s_nop 11")
    rowmax(S[0], 11, False)
    k(f"s_add_u32 s26, s26, 1\ns_cmp_lg_u32 s26, 64\ns_cbranch_scc1 {l1}")
    setpad()
    for i in range(16): k(f"v_mov_b32 v{O+i}, 0")
    k("s_mov_b32 s26, 0")
    l2 = k.lab("p2"); k.label(l2)
    ldk()
    k(f"s_sub_u32 s16, s26, 1\ns_and_b32 s16, s16, 63\ns_mul_i32 s16, s16, 2560\ns_add_u32 s16, s16, s12")
    k(f"s_mul_i32 s17, s26, 2560\ns_add_u32 s17, s17, s12")
    k("s_mov_b64 exec, s[22:23]")
    k(f"buffer_load_dwordx4 {vr(st['V0'],4)}, v10, {ws}, s16 offen offset:1024")
    k(f"buffer_load_dwordx4 {vr(st['V1'],4)}, v10, {ws}, s17 offen offset:1664")
    k("s_mov_b64 exec, -1\ns_waitcnt vmcnt(0)")
    qk(S[0], st['K16'], st['K4'])
    k("s_nop 11")
    for i in range(16): k(f"v_exp_f32 v{S[0]+i}, v{S[0]+i}")
    k("s_nop 1")
    k(f"v_smfmac_f32_32x32x32_bf16 {vr(O,16)}, {vr(st['V0'],4)}, {vr(S[0],8)}, v{IDX}")
    k(f"v_smfmac_f32_32x32x32_bf16 {vr(O,16)}, {vr(st['V1'],4)}, {vr(S[0]+8,8)}, v{IDX}")
    k(f"s_add_u32 s26, s26, 1\ns_cmp_lg_u32 s26, 64\ns_cbranch_scc1 {l2}")
    k("s_nop 11")
    getl()
    k(f"s_branch {norm}")
    return k
```

```python
from asmlib import *
import math, struct

NAME = "gated_mix__softmax_full_mha__glu_gated_glu__prompt"
WS_QF = 0x0000000
WS_KV = 0x0400000
WS_HF = 0x0A00000
WS_OF = 0x1200000
WS_G  = 0x1500000
WS_END = 0x1A00000
QSCALE = math.log2(math.e) / math.sqrt(20.0)
LOG2E = math.log2(math.e)
def f32hex(x): return "0x%08x" % struct.unpack("<I", struct.pack("<f", x))[0]

KA = dict(x=0, wqkv=8, wo=16, bx=24, wg=32, wu=40, wd=48, gw=56, out=64, dbg=72, ws=80)
SZ = dict(x=2048*640*2, wqkv=640*1920*2, wo=640*640*2, wg=640*1728*2, wu=640*1728*2, wd=1728*640*2, gw=1280, out=2048*640*2, dbg=256, ws=WS_END)

def load_srds(k, items, tmp=None):
    for n, r in items:
        k(f"s_load_dwordx2 {sr(r,2)}, s[0:1], {KA[n]}")
    for n, r in items:
        k(f"s_mov_b32 s{r+2}, {SZ[n]}")
        k(f"s_mov_b32 s{r+3}, 0x20000")

HEADER = """; Kernarg layout for this problem (88 bytes, ptrs only, base s[0:1]):
"""

def assemble(launches, path):
    out = HEADER
    if len(launches) == 1 and launches[0][0].name == NAME + "_kernel":
        k, g, b, l = launches[0]
        out += f"; @launch grid=({g},1,1) block=({b},1,1) lds={l}\n"
    else:
        for k, g, b, l in launches:
            out += f"; @launch kernel={k.name} grid=({g},1,1) block=({b},1,1) lds={l}\n"
    out += '.amdgcn_target "amdgcn-amd-amdhsa--gfx950"\n.text\n'
    seen = []
    for k, g, b, l in launches:
        if k not in seen: seen.append(k)
    nerr = 0
    for k in seen:
        nerr += len(check(k))
        out += k.text()
    out += '.section .rodata,"a"\n'
    for k in seen: out += k.desc()
    open(path, "w").write(out)
    print("written", path, len(out), "bytes; checker findings:", nerr)
```

```python
from common import *

def k1_simple():
    k = Kern("k1s_kernel", vgpr=64, sgpr=64)
    end = k.lab("end")
    k(f"s_cmp_ge_u32 s2, {169*64}\ns_cbranch_scc1 {end}")
    X, WA, WB, WS = 8, 12, 16, 20
    load_srds(k, [("x", X), ("ws", WS)])
    k("s_load_dwordx2 s[24:25], s[0:1], %d" % KA["wqkv"])
    k("s_load_dwordx2 s[26:27], s[0:1], %d" % KA["wg"])
    k("s_load_dwordx2 s[28:29], s[0:1], %d" % KA["wu"])
    k("s_load_dwordx2 s[30:31], s[0:1], %d" % KA["gw"])
    k("s_lshr_b32 s4, s2, 6\ns_and_b32 s5, s2, 63")
    k("v_and_b32 v1, 31, v0\nv_lshrrev_b32 v2, 5, v0")
    k("s_waitcnt lgkmcnt(0)")
    k(f"s_lshl_b32 s6, s5, 5\nv_add_u32 v3, s6, v1\nv_mul_u32_u24 v3, 1280, v3\nv_lshl_add_u32 v3, v2, 4, v3")
    lgu, lg, lgo = k.lab("gu"), k.lab("g"), k.lab("go")
    k(f"s_mov_b32 s{WA+3}, 0x20000\ns_mov_b32 s{WB+3}, 0x20000")
    k(f"s_cmp_ge_u32 s4, 168\ns_cbranch_scc1 {lg}\ns_cmp_ge_u32 s4, 60\ns_cbranch_scc1 {lgu}")
    k(f"s_mov_b32 s{WA}, s24\ns_mov_b32 s{WA+1}, s25\ns_mov_b32 s{WA+2}, {SZ['wqkv']}")
    k(f"s_mov_b32 s{WB}, s24\ns_mov_b32 s{WB+1}, s25\ns_mov_b32 s{WB+2}, {SZ['wqkv']}")
    k("s_mov_b32 s7, 3840\ns_lshl_b32 s6, s4, 5\nv_add_u32 v4, s6, v1\nv_lshlrev_b32 v4, 1, v4")
    k(f"s_branch {lgo}")
    k.label(lgu)
    k(f"s_mov_b32 s{WA}, s26\ns_mov_b32 s{WA+1}, s27\ns_mov_b32 s{WA+2}, {SZ['wg']}")
    k(f"s_mov_b32 s{WB}, s28\ns_mov_b32 s{WB+1}, s29\ns_mov_b32 s{WB+2}, {SZ['wu']}")
    k("s_mov_b32 s7, 3456\ns_sub_u32 s6, s4, 60\ns_lshl_b32 s6, s6, 4\nv_and_b32 v4, 15, v1\nv_add_u32 v4, s6, v4\nv_lshlrev_b32 v4, 1, v4")
    k(f"s_branch {lgo}")
    k.label(lg)
    k(f"s_mov_b32 s{WA}, s30\ns_mov_b32 s{WA+1}, s31\ns_mov_b32 s{WA+2}, {SZ['gw']}")
    k(f"s_mov_b32 s{WB}, s30\ns_mov_b32 s{WB+1}, s31\ns_mov_b32 s{WB+2}, {SZ['gw']}")
    k("s_mov_b32 s7, 2\nv_mov_b32 v4, 0")
    k.label(lgo)
    k("s_lshl_b32 s6, s7, 3\nv_mul_lo_u32 v5, v2, s6\nv_add_u32 v4, v4, v5")
    for j in range(8): k(f"s_mul_i32 s{32+j}, s7, {j}")
    k("s_lshl_b32 s40, s7, 4")
    for i in range(32): k(f"v_mov_b32 v{16+i}, 0")
    k("s_mov_b32 s42, 0x0000ffff\ns_mov_b32 s43, 0x0000ffff\ns_mov_b32 s44, 0xffff0000\ns_mov_b32 s45, 0xffff0000")
    k("s_mov_b32 s41, 40")
    loop = k.lab("loop"); k.label(loop)
    k(f"buffer_load_dwordx4 v[8:11], v3, {sr(X,4)}, 0 offen")
    for msk, srd in ((42, WA), (44, WB)):
        k(f"s_mov_b64 exec, {sr(msk,2)}")
        for j in range(8):
            k(f"buffer_load_ushort v{48+j}, v4, {sr(srd,4)}, s{32+j} offen")
    k("s_mov_b64 exec, -1")
    k("s_waitcnt vmcnt(0)")
    for j in range(4): k(f"v_lshl_or_b32 v{12+j}, v{49+2*j}, 16, v{48+2*j}")
    k("s_nop 1")
    k("v_mfma_f32_32x32x16_bf16 v[16:31], v[12:15], v[8:11], v[16:31]")
    k("v_mfma_f32_32x32x16_bf16 v[32:47], v[8:11], v[12:15], v[32:47]")
    k("v_add_u32 v3, 32, v3\nv_add_u32 v4, s40, v4")
    k(f"s_sub_u32 s41, s41, 1\ns_cmp_lg_u32 s41, 0\ns_cbranch_scc1 {loop}")
    k("s_nop 15")
    egu, eg, ev, ek = k.lab("egu"), k.lab("eg"), k.lab("ev"), k.lab("ek")
    k(f"s_cmp_ge_u32 s4, 168\ns_cbranch_scc1 {eg}\ns_cmp_ge_u32 s4, 60\ns_cbranch_scc1 {egu}\ns_cmp_ge_u32 s4, 40\ns_cbranch_scc1 {ev}\ns_cmp_ge_u32 s4, 20\ns_cbranch_scc1 {ek}")
    def qk(isk):
        stride, off4, base = (2560, 2304, WS_KV) if isk else (1280, 1024, WS_QF)
        if isk:
            k("v_and_b32 v5, 0x13, v1\nv_and_b32 v6, 4, v1\nv_lshl_or_b32 v5, v6, 1, v5\nv_and_b32 v6, 8, v1\nv_lshrrev_b32 v6, 1, v6\nv_or_b32 v5, v5, v6")
            k("s_sub_u32 s6, s4, 20\ns_sub_u32 s46, s5, 3\ns_and_b32 s46, s46, 63")
        else:
            k(f"v_mov_b32 v5, v1\ns_mov_b32 s6, s4\ns_mov_b32 s46, s5\ns_mov_b32 s47, {f32hex(QSCALE)}")
            for i in range(16): k(f"v_mul_f32 v{16+i}, s47, v{16+i}")
        k(f"s_lshl_b32 s6, s6, 3\ns_mul_i32 s46, s46, {stride}\ns_add_u32 s46, s46, {base}")
        for q4 in range(4):
            k(f"v_add_u32 v6, s6, v2\nv_add_u32 v6, {2*q4}, v6")
            k("v_mul_u32_u24 v7, 205, v6\nv_lshrrev_b32 v7, 10, v7")
            k("v_mul_u32_u24 v8, 5, v7\nv_sub_u32 v8, v6, v8")
            k(f"v_mul_u32_u24 v7, {64*stride}, v7")
            k("v_lshrrev_b32 v9, 1, v8\nv_lshlrev_b32 v9, 9, v9\nv_lshl_add_u32 v9, v5, 4, v9\nv_and_b32 v10, 1, v8\nv_lshl_add_u32 v9, v10, 3, v9")
            k(f"v_lshlrev_b32 v10, 3, v5\nv_add_u32 v10, {off4}, v10")
            k("v_cmp_eq_u32 vcc, 4, v8\ns_nop 1\nv_cndmask_b32 v9, v9, v10, vcc\nv_add_u32 v9, v9, v7")
            k(f"v_cvt_pk_bf16_f32 v12, v{16+4*q4}, v{17+4*q4}\nv_cvt_pk_bf16_f32 v13, v{18+4*q4}, v{19+4*q4}")
            k(f"buffer_store_dwordx2 v[12:13], v9, {sr(WS,4)}, s46 offen\ns_waitcnt vmcnt(0)")
        k(f"s_branch {end}")
    qk(False)
    k.label(ek); qk(True)
    k.label(ev)
    k("s_sub_u32 s6, s4, 40\ns_lshl_b32 s6, s6, 5\nv_add_u32 v6, s6, v1")
    k("v_mul_u32_u24 v7, 3277, v6\nv_lshrrev_b32 v7, 16, v7\nv_mul_u32_u24 v8, 20, v7\nv_sub_u32 v8, v6, v8")
    k(f"v_mul_u32_u24 v7, {64*2560}, v7\nv_mul_u32_u24 v9, 20, v2\nv_add_u32 v9, v9, v8\nv_lshl_add_u32 v9, v9, 4, v7")
    for j in range(2):
        k(f"s_sub_u32 s46, s5, {1-j}\ns_and_b32 s46, s46, 63\ns_mul_i32 s46, s46, 2560\ns_add_u32 s46, s46, {WS_KV + 1024 + 640*j}")
        for i in range(4): k(f"v_cvt_pk_bf16_f32 v{12+i}, v{32+8*j+2*i}, v{33+8*j+2*i}")
        k(f"buffer_store_dwordx4 v[12:15], v9, {sr(WS,4)}, s46 offen\ns_waitcnt vmcnt(0)")
    k(f"s_branch {end}")
    k.label(egu)
    k(f"s_mov_b32 s47, {f32hex(-LOG2E)}")
    for i in range(8):
        k(f"v_mul_f32 v{16+i}, s47, v{16+i}\nv_exp_f32 v{16+i}, v{16+i}\ns_nop 0\nv_add_f32 v{16+i}, 1.0, v{16+i}\nv_rcp_f32 v{16+i}, v{16+i}\ns_nop 0\nv_mul_f32 v{16+i}, v{16+i}, v{24+i}")
    for i in range(4): k(f"v_cvt_pk_bf16_f32 v{12+i}, v{16+2*i}, v{17+2*i}")
    k(f"s_mul_i32 s46, s5, 108\ns_add_u32 s46, s46, s4\ns_sub_u32 s46, s46, 60\ns_lshl_b32 s46, s46, 10\ns_add_u32 s46, s46, {WS_HF}")
    k(f"v_lshlrev_b32 v9, 4, v0\nbuffer_store_dwordx4 v[12:15], v9, {sr(WS,4)}, s46 offen")
    k(f"s_branch {end}")
    k.label(eg)
    k(f"s_mov_b32 s47, {f32hex(-LOG2E)}")
    k("v_mul_f32 v16, s47, v16\nv_exp_f32 v16, v16\ns_nop 0\nv_add_f32 v16, 1.0, v16\nv_rcp_f32 v16, v16")
    k(f"s_lshl_b32 s46, s5, 7\ns_add_u32 s46, s46, {WS_G}\nv_lshlrev_b32 v9, 2, v1")
    k(f"buffer_store_dword v16, v9, {sr(WS,4)}, s46 offen")
    k.label(end)
    k("s_endpgm")
    return k

def k3_simple():
    k = Kern("k3s_kernel", vgpr=64, sgpr=64)
    end = k.lab("end")
    k(f"s_cmp_ge_u32 s2, {20*64}\ns_cbranch_scc1 {end}")
    WD, WO, WS, OUT = 8, 12, 16, 20
    load_srds(k, [("wd", WD), ("wo", WO), ("ws", WS), ("out", OUT)])
    k("s_lshr_b32 s4, s2, 6\ns_and_b32 s5, s2, 63")
    k("v_and_b32 v1, 31, v0\nv_lshrrev_b32 v2, 5, v0\nv_lshlrev_b32 v3, 4, v0")
    k("s_lshl_b32 s6, s4, 5\nv_add_u32 v6, s6, v1\nv_lshlrev_b32 v6, 1, v6")
    for i in range(32): k(f"v_mov_b32 v{16+i}, 0")
    k("s_waitcnt lgkmcnt(0)")
    def run(srd, acc, nsteps, actbase, tbstride, step0, rows, hbrows, row0, steprows):
        for j in range(8): k(f"s_mov_b32 s{32+j}, {rows[j]*1280}")
        k(f"v_mul_u32_u24 v4, {hbrows*1280}, v2\nv_add_u32 v4, v4, v6\nv_add_u32 v4, {row0*1280}, v4")
        k(f"s_mul_i32 s42, s5, {tbstride*1024}\ns_add_u32 s42, s42, {actbase + step0*1024}")
        k(f"s_mov_b32 s41, {nsteps}")
        loop = k.lab("loop"); k.label(loop)
        k(f"buffer_load_dwordx4 v[8:11], v3, {sr(WS,4)}, s42 offen")
        for j in range(8):
            k(f"buffer_load_ushort v{48+j}, v4, {sr(srd,4)}, s{32+j} offen")
        k("s_waitcnt vmcnt(0)")
        for j in range(4): k(f"v_lshl_or_b32 v{12+j}, v{49+2*j}, 16, v{48+2*j}")
        k("s_nop 1")
        k(f"v_mfma_f32_32x32x16_bf16 {vr(acc,16)}, v[12:15], v[8:11], {vr(acc,16)}")
        k(f"v_add_u32 v4, {steprows*1280}, v4\ns_add_u32 s42, s42, 1024")
        k(f"s_sub_u32 s41, s41, 1\ns_cmp_lg_u32 s41, 0\ns_cbranch_scc1 {loop}")
    r8 = [0,1,2,3,8,9,10,11]
    run(WD, 16, 108, WS_HF, 108, 0, r8, 4, 0, 16)
    run(WO, 32, 32, WS_OF, 40, 0, r8, 4, 0, 20)
    run(WO, 32, 8, WS_OF, 40, 32, [0,1,2,3,20,21,22,23], 40, 16, 80)
    k(f"s_lshl_b32 s46, s5, 7\ns_add_u32 s46, s46, {WS_G}\nv_lshlrev_b32 v9, 2, v1")
    k(f"buffer_load_dword v10, v9, {sr(WS,4)}, s46 offen")
    k("s_lshl_b32 s6, s5, 5\nv_add_u32 v7, s6, v1\nv_mul_u32_u24 v7, 1280, v7\nv_lshl_add_u32 v7, v2, 3, v7\ns_lshl_b32 s6, s4, 6")
    k("s_nop 15\ns_waitcnt vmcnt(0)")
    for i in range(16):
        k(f"v_sub_f32 v{32+i}, v{32+i}, v{16+i}\nv_fma_f32 v{16+i}, v10, v{32+i}, v{16+i}")
    for q4 in range(4):
        k(f"v_cvt_pk_bf16_f32 v{12}, v{16+4*q4}, v{17+4*q4}\nv_cvt_pk_bf16_f32 v13, v{18+4*q4}, v{19+4*q4}")
        k(f"buffer_store_dwordx2 v[12:13], v7, {sr(OUT,4)}, s6 offen offset:{16*q4}\ns_waitcnt vmcnt(0)")
    k.label(end)
    k("s_endpgm")
    return k
```

```python
import sys
from simple import *
from attn import *
slow = len(sys.argv) > 2 and sys.argv[2] == 'slow'
assemble([(k1_simple(), 169*64, 64, 0), (k2_attn(force_slow=slow), 256, 512, 3*CH), (k3_simple(), 1280, 64, 0)], sys.argv[1])
```

```python
import sys
from simple import *
from attn import *
def empty():
    k = Kern("ke_kernel", vgpr=8, sgpr=16); k("s_endpgm"); return k
def probe(kind, arg=None, mult=200):
    k = Kern("kp_kernel", vgpr=128, sgpr=32)
    end = k.lab("end")
    k(f"s_cmp_ge_u32 s2, 1\ns_cbranch_scc1 {end}")
    if kind == 'lat':
        load_srds(k, [(arg, 8)])
        k("v_mov_b32 v1, 0x40000\ns_waitcnt lgkmcnt(0)")
        k("v_mov_b32 v3, 0x100\nbuffer_load_dword v2, v3, s[8:11], 0 offen\ns_waitcnt vmcnt(0)")
        k("s_memtime s[12:13]\ns_waitcnt lgkmcnt(0)\nbuffer_load_dword v2, v1, s[8:11], 0 offen\ns_waitcnt vmcnt(0)\ns_memtime s[14:15]\ns_waitcnt lgkmcnt(0)")
        k(f"s_sub_u32 s16, s14, s12\ns_mul_i32 s16, s16, {mult}")
    elif kind == 'code':
        k("s_memtime s[12:13]\ns_waitcnt lgkmcnt(0)")
        for i in range(1024): k(f"v_fma_f32 v{16+i%32}, v{48+i%16}, v{64+i%16}, v{80+i%16}")
        k(f"s_memtime s[14:15]\ns_waitcnt lgkmcnt(0)\ns_sub_u32 s16, s14, s12\ns_mul_i32 s16, s16, {mult}")
    elif kind == 'clk':
        k(f"s_memtime s[14:15]\ns_waitcnt lgkmcnt(0)\ns_mov_b32 s16, 240000")
    l = k.lab("spin"); k.label(l)
    k(f"s_memtime s[12:13]\ns_waitcnt lgkmcnt(0)\ns_sub_u32 s17, s12, s14\ns_cmp_lt_u32 s17, s16\ns_cbranch_scc1 {l}")
    k.label(end); k("s_endpgm")
    return k
base = lambda: [(k1_simple(), 169*64, 64, 0), (k2_attn(), 256, 512, 3*CH), (k3_simple(), 1280, 64, 0)]
e = empty()
assemble(base(), 'pA.s')
assemble(base() + [(e, 256, 256, 0)] * 20, 'pB.s')
assemble([(probe('lat', 'x'), 1, 64, 0)] + base(), 'pC.s')
assemble([(probe('lat', 'wd'), 1, 64, 0)] + base(), 'pD.s')
assemble([(probe('code', mult=20), 1, 64, 0)] + base(), 'pE.s')
assemble([(probe('clk'), 1, 64, 0)] + base(), 'pF.s')
```

```python
from common import *

TS = 2592
CH = 8 * TS

class AttnRegs:
    O = [16, 144]; S = [32, 48, 64, 80]; Q16 = [96, 160]; Q4 = [100, 164]; IDX = 102
    sets = [dict(K16=104, K4=108, V0=112, V1=116), dict(K16=120, K4=124, V0=128, V1=132)]
    KM16, KM4, KT16, KT4 = 136, 140, 8, 12
    aK16, aK4, aV0, aV1, gL = 4, 5, 6, 7, 103

def k2_attn2(name="k2_kernel", force_slow=False, stamp=False, prio=True):
    k = Kern(name, vgpr=176, sgpr=64)
    R = AttnRegs
    O, S, Q16, Q4, IDX, sets = R.O, R.S, R.Q16, R.Q4, R.IDX, R.sets
    aK16, aK4, aV0, aV1, gL = R.aK16, R.aK4, R.aV0, R.aV1, R.gL
    end = k.lab("end")
    WS = 8
    ws = sr(WS, 4)
    T0, T1 = 168, 169
    k(f"s_cmp_ge_u32 s2, 256\ns_cbranch_scc1 {end}")
    if stamp: k("s_memtime s[40:41]")
    load_srds(k, [("ws", WS)])
    k("""v_lshrrev_b32 v1, 6, v0
    v_and_b32 v0, 63, v0
    v_readfirstlane_b32 s6, v1
    s_and_b32 s4, s2, 7
    s_lshl_b32 s4, s4, 2
    s_lshr_b32 s5, s2, 6
    s_add_u32 s4, s4, s5
    s_lshr_b32 s5, s2, 3
    s_and_b32 s5, s5, 7
    s_lshl_b32 s5, s5, 3
    s_and_b32 s7, s6, 3
    s_lshl_b32 s7, s7, 1
    s_add_u32 s5, s5, s7
    s_lshr_b32 s7, s6, 2""")
    k(f"v_lshlrev_b32 v{gL}, 4, v0\nv_and_b32 v1, 31, v0\nv_lshrrev_b32 v2, 5, v0")
    k(f"s_mul_i32 s12, s4, {64*2560}\ns_add_u32 s12, s12, {WS_KV}")
    k(f"s_mul_i32 s19, s7, {32*2560}\ns_add_u32 s19, s19, s12")
    k(f"s_lshl_b32 s13, s4, 6\ns_add_u32 s13, s13, s5\ns_mul_i32 s13, s13, 1280\ns_add_u32 s13, s13, {WS_QF}")
    k(f"s_and_b32 s14, s6, 3\ns_mul_i32 s14, s14, 2560\ns_add_u32 s14, s14, s19")
    k(f"s_mul_i32 s15, s6, {TS}")
    k(f"s_add_u32 s16, s12, {30*2560}\ns_add_u32 s17, s19, {30*2560}\ns_add_u32 s18, s19, {31*2560}")
    k("s_mov_b32 s20, 0xffffffff\ns_mov_b32 s21, 0\ns_mov_b32 s22, 0x000fffff\ns_mov_b32 s23, 0x000fffff")
    k("s_mov_b32 s24, 0x3f803f80\ns_mov_b32 s25, 0x00003f80")
    for q in range(2): k(f"v_mov_b32 v{Q4[q]}, 0\nv_mov_b32 v{Q4[q]+1}, 0")
    for r in (sets[0]['K4'], R.KM4, R.KT4):
        k(f"v_mov_b32 v{r}, s24\nv_mov_b32 v{r+1}, s25")
    for i in range(4): k(f"v_mov_b32 v{sets[0]['V0']+i}, s24\nv_mov_b32 v{sets[0]['V1']+i}, s24")
    k(f"v_lshlrev_b32 v{T0}, 3, v1")
    k(f"v_mul_u32_u24 v3, 20, v2\nv_add_u32 v3, v3, v1\nv_lshlrev_b32 v{T1}, 4, v3")
    k("s_waitcnt lgkmcnt(0)")
    k(f"buffer_load_dwordx4 {vr(Q16[0],4)}, v{gL}, {ws}, s13 offen")
    k(f"buffer_load_dwordx4 {vr(Q16[1],4)}, v{gL}, {ws}, s13 offen offset:1280")
    k(f"buffer_load_dwordx4 {vr(R.KM16,4)}, v{gL}, {ws}, s16 offen")
    k("s_mov_b64 exec, s[20:21]")
    k(f"buffer_load_dwordx2 {vr(Q4[0],2)}, v{T0}, {ws}, s13 offen offset:1024")
    k(f"buffer_load_dwordx2 {vr(Q4[1],2)}, v{T0}, {ws}, s13 offen offset:2304")
    k(f"buffer_load_dwordx2 {vr(R.KM4,2)}, v{T0}, {ws}, s16 offen offset:2304")
    k(f"buffer_load_dwordx2 {vr(R.KT4,2)}, v{T0}, {ws}, s17 offen offset:2304")
    k(f"buffer_load_dwordx2 {vr(sets[0]['K4'],2)}, v{T0}, {ws}, s18 offen offset:2304")
    k("s_mov_b64 exec, s[22:23]")
    k(f"buffer_load_dwordx4 {vr(sets[0]['V0'],4)}, v{T1}, {ws}, s18 offen offset:1024")
    k(f"buffer_load_dwordx4 {vr(sets[0]['V1'],4)}, v{T1}, {ws}, s18 offen offset:1664")
    k("s_mov_b64 exec, -1")
    k(f"buffer_load_dwordx4 {vr(R.KT16,4)}, v{gL}, {ws}, s17 offen")
    k(f"buffer_load_dwordx4 {vr(sets[0]['K16'],4)}, v{gL}, {ws}, s18 offen")
    def dma(m0expr):
        k(m0expr)
        k("s_nop 0")
        k(f"buffer_load_dwordx4 v{gL}, {ws}, s14 offen lds")
        k(f"buffer_load_dwordx4 v{gL}, {ws}, s14 offen offset:1024 lds")
        k("s_mov_b64 exec, s[20:21]")
        k(f"buffer_load_dwordx4 v{gL}, {ws}, s14 offen offset:2048 lds")
        k("s_mov_b64 exec, -1")
    dma("s_mov_b32 m0, s15")
    k(f"s_add_u32 s14, s14, {4*2560}")
    dma(f"s_add_u32 m0, s15, {CH}")
    k(f"s_add_u32 s14, s14, {4*2560}")
    k(f"v_mul_u32_u24 v3, {TS}, v0\nv_mov_b32 v32, s24\nv_mov_b32 v33, s24\nv_mov_b32 v34, s24\nv_mov_b32 v35, s24\nv_mov_b32 v36, s24\nv_mov_b32 v37, s25")
    k("s_mov_b64 exec, 0xffffff")
    k("ds_write_b128 v3, v[32:35] offset:2560")
    k("ds_write_b64 v3, v[36:37] offset:2576")
    k("s_mov_b64 exec, -1")
    k(f"s_mul_i32 s28, s7, {4*TS}")
    k(f"v_mov_b32 v{aK16}, v{gL}")
    k(f"v_add_u32 v{aK4}, 2304, v{T0}\nv_mov_b32 v3, 2576\nv_cmp_eq_u32 vcc, 0, v2\ns_nop 1\nv_cndmask_b32 v{aK4}, v3, v{aK4}, vcc")
    k(f"v_add_u32 v{aV0}, 1024, v{T1}\nv_add_u32 v{aV1}, 1664, v{T1}\nv_mov_b32 v3, 2560\nv_cmp_gt_u32 vcc, 20, v1\ns_nop 1")
    k(f"v_cndmask_b32 v{aV0}, v3, v{aV0}, vcc\nv_cndmask_b32 v{aV1}, v3, v{aV1}, vcc")
    k(f"v_mov_b32 v{IDX}, 0xdddddddd")
    for q in range(2):
        for i in range(16): k(f"v_mov_b32 v{O[q]+i}, 0")
    for i in range(8): k(f"v_mov_b32 v{S[3]+8+i}, 0")
    for i in range(4): k(f"v_mov_b32 v{sets[1]['V1']+i}, 0")
    def qk(sb, k16, k4, q):
        k(f"v_mfma_f32_32x32x16_bf16 {vr(sb,16)}, {vr(k16,4)}, {vr(Q16[q],4)}, 0")
        k(f"v_mfma_f32_32x32x8_bf16 {vr(sb,16)}, {vr(k4,2)}, {vr(Q4[q],2)}, {vr(sb,16)}")
    def rowmax(sb, dst, first):
        if first:
            k(f"v_max3_f32 v{dst}, v{sb}, v{sb+1}, v{sb+2}")
            rest = list(range(3, 16)) + [0]
        else:
            rest = list(range(16))
        for i in range(0, len(rest), 2):
            k(f"v_max3_f32 v{dst}, v{dst}, v{sb+rest[i]}, v{sb+rest[i+1]}")
    def setpad(m, q):
        a, b, c = 173, 174, 175
        k(f"v_mov_b32 v{a}, v{m}\ns_nop 1\nv_permlane32_swap_b32 v{m}, v{a}\ns_nop 1\nv_max_f32 v{m}, v{m}, v{a}")
        k(f"""v_xor_b32 v{m}, 0x80000000, v{m}
        v_and_b32 v{a}, 0xffff0000, v{m}
        v_sub_f32 v{b}, v{m}, v{a}
        v_and_b32 v{c}, 0xffff0000, v{b}
        v_sub_f32 v{b}, v{b}, v{c}
        v_lshrrev_b32 v{a}, 16, v{a}
        v_or_b32 v{a}, v{a}, v{c}
        v_lshrrev_b32 v{b}, 16, v{b}
        v_cmp_eq_u32 vcc, 0, v2
        s_nop 1""")
        k(f"v_cndmask_b32 v{Q4[q]}, v{a}, v{Q4[q]}, vcc\nv_cndmask_b32 v{Q4[q]+1}, v{b}, v{Q4[q]+1}, vcc\ns_nop 1")
    k("s_waitcnt vmcnt(12)")
    qk(S[0], R.KM16, R.KM4, 0)
    qk(S[1], R.KM16, R.KM4, 1)
    k("s_nop 9")
    rowmax(S[0], 171, True)
    rowmax(S[1], 172, True)
    setpad(171, 0); setpad(172, 1)
    k("s_waitcnt vmcnt(6)")
    qk(S[0], R.KT16, R.KT4, 0)
    qk(S[1], R.KT16, R.KT4, 1)
    k("s_mov_b32 s26, 0")
    k(f"s_mov_b32 s27, {2*CH}")
    k("s_nop 7")
    if stamp: k("s_memtime s[42:43]\ns_waitcnt lgkmcnt(0)")
    loop = k.lab("loop")
    k(".p2align 6")
    k.label(loop)
    for p in range(8):
        t = p >> 1; q = p & 1
        cur, nxt = sets[t & 1], sets[(t + 1) & 1]
        sb = S[p % 4]; sprev = S[(p - 1) % 4]; snew = S[(p + 2) % 4]
        D = [[], [], [], []]
        if p == 0:
            for a in (aK16, aK4, aV0, aV1): k(f"v_add_u32 v{a}, s28, v{a}")
            k("s_waitcnt vmcnt(3) lgkmcnt(0)\ns_barrier")
        elif q == 0:
            k("s_waitcnt lgkmcnt(0)")
        if q == 0:
            if prio: k(f"s_setprio {3-t}")
            D = [[f"ds_read_b128 {vr(nxt['V1'],4)}, v{aV1} offset:{t*TS}"], [f"ds_read_b128 {vr(nxt['K16'],4)}, v{aK16} offset:{t*TS}"],
                 [f"ds_read_b64 {vr(nxt['K4'],2)}, v{aK4} offset:{t*TS}"], [f"ds_read_b128 {vr(nxt['V0'],4)}, v{aV0} offset:{t*TS}"]]
        if p == 1:
            D[0] = ["s_add_u32 m0, s15, s27", "s_nop 0", f"buffer_load_dwordx4 v{gL}, {ws}, s14 offen lds"]
            D[1] = [f"buffer_load_dwordx4 v{gL}, {ws}, s14 offen offset:1024 lds"]
            D[2] = ["s_mov_b64 exec, s[20:21]", f"buffer_load_dwordx4 v{gL}, {ws}, s14 offen offset:2048 lds", "s_mov_b64 exec, -1"]
        if p == 3:
            D[0] = f"""s_add_u32 s14, s14, {4*2560}
            s_cmp_eq_u32 s26, 5
            s_cselect_b32 s29, {32*2560}, 0
            s_sub_u32 s14, s14, s29""".split("\n")
            D[1] = f"""s_mov_b32 s28, {CH}
            s_cmp_eq_u32 s27, s28
            s_cselect_b32 s28, {(-2*CH) & 0xffffffff}, s28""".split("\n")
            D[2] = f"""s_add_u32 s27, s27, {CH}
            s_cmp_eq_u32 s27, {3*CH}
            s_cselect_b32 s27, 0, s27
            s_add_u32 s26, s26, 1""".split("\n")
        e = lambda i: k(f"v_exp_f32 v{sb+i}, v{sb+i}")
        v1 = nxt['V1'] if q == 0 else cur['V1']
        e(0); e(1)
        k(f"v_smfmac_f32_32x32x32_bf16 {vr(O[1-q],16)}, {vr(v1,4)}, {vr(sprev+8,8)}, v{IDX}")
        k("\n".join(D[0]))
        for i in range(2, 6): e(i)
        k(f"v_mfma_f32_32x32x16_bf16 {vr(snew,16)}, {vr(cur['K16'],4)}, {vr(Q16[q],4)}, 0")
        k("\n".join(D[1]))
        for i in range(6, 10): e(i)
        k(f"v_mfma_f32_32x32x8_bf16 {vr(snew,16)}, {vr(cur['K4'],2)}, {vr(Q4[q],2)}, {vr(snew,16)}")
        k("\n".join(D[2]))
        for i in range(10, 14): e(i)
        k(f"v_smfmac_f32_32x32x32_bf16 {vr(O[q],16)}, {vr(cur['V0'],4)}, {vr(sb,8)}, v{IDX}")
        k("\n".join(D[3]))
        e(14); e(15)
    k(f"s_cmp_lg_u32 s26, 8\ns_cbranch_scc1 {loop}")
    if stamp: k("s_memtime s[44:45]")
    k("s_waitcnt vmcnt(0) lgkmcnt(0)")
    k(f"v_smfmac_f32_32x32x32_bf16 {vr(O[1],16)}, {vr(sets[1]['V1'],4)}, {vr(S[3]+8,8)}, v{IDX}")
    k("s_barrier")
    k(f"s_mul_i32 s28, s6, 3072\ns_xor_b32 s29, s6, 4\ns_mul_i32 s29, s29, 3072\nv_add_u32 v3, s28, v{gL}\nv_add_u32 v4, s29, v{gL}")
    h1 = k.lab("h1"); hj = k.lab("hj")
    k(f"s_cmp_eq_u32 s7, 1\ns_nop 6\ns_cbranch_scc1 {h1}")
    for i in range(3): k(f"ds_write_b128 v3, {vr(O[1]+4*i,4)} offset:{1024*i}")
    k(f"s_branch {hj}")
    k.label(h1)
    for i in range(3): k(f"ds_write_b128 v3, {vr(O[0]+4*i,4)} offset:{1024*i}")
    k("s_nop 1")
    for i in range(12): k(f"v_mov_b32 v{O[0]+i}, v{O[1]+i}")
    for i in range(4): k(f"v_mov_b32 v{Q16[0]+i}, v{Q16[1]+i}")
    k(f"v_mov_b32 v{Q4[0]}, v{Q4[1]}\nv_mov_b32 v{Q4[0]+1}, v{Q4[1]+1}")
    k.label(hj)
    k("s_add_u32 s5, s5, s7")
    k("s_waitcnt lgkmcnt(0)\ns_barrier")
    O = O[0]
    for i in range(3): k(f"ds_read_b128 {vr(32+4*i,4)}, v4 offset:{1024*i}")
    k("s_mov_b32 s30, 0x5f800000")
    k("s_waitcnt lgkmcnt(0)")
    for i in range(12): k(f"v_add_f32 v{O+i}, v{O+i}, v{32+i}")
    norm = k.lab("norm"); slow = k.lab("slow")
    def getl():
        k(f"v_mov_b32 v171, v{O+8}\nv_mov_b32 v172, v{O+8}\ns_nop 1\nv_permlane32_swap_b32 v171, v172\ns_nop 1")
    getl()
    if force_slow:
        k(f"s_branch {slow}")
    k(f"v_cmp_nle_f32 vcc, v172, s30\ns_nop 1\ns_cmp_lg_u64 vcc, 0\ns_cbranch_scc1 {slow}")
    k.label(norm)
    k("v_rcp_f32 v172, v172")
    k(f"s_mul_i32 s13, s5, 40\ns_add_u32 s16, s13, s4\ns_lshl_b32 s16, s16, 10\ns_add_u32 s16, s16, {WS_OF}")
    k(f"s_lshr_b32 s17, s4, 2\ns_add_u32 s17, s17, s13\ns_add_u32 s17, s17, 32\ns_lshl_b32 s17, s17, 10\ns_add_u32 s17, s17, {WS_OF}")
    k("s_and_b32 s18, s4, 2\ns_lshl_b32 s18, s18, 8\ns_add_u32 s17, s17, s18\ns_and_b32 s18, s4, 1\ns_lshl_b32 s18, s18, 3\ns_add_u32 s17, s17, s18")
    for i in range(12): k(f"v_mul_f32 v{O+i}, v172, v{O+i}")
    for i in range(6): k(f"v_cvt_pk_bf16_f32 v{32+i}, v{O+2*i}, v{O+2*i+1}")
    k(f"buffer_store_dwordx4 v[32:35], v{gL}, {ws}, s16 offen")
    k("s_mov_b64 exec, s[20:21]")
    k(f"buffer_store_dwordx2 v[36:37], v{gL}, {ws}, s17 offen")
    if stamp:
        k("s_mov_b64 exec, -1\ns_waitcnt vmcnt(0)\ns_memtime s[46:47]\ns_waitcnt lgkmcnt(0)")
        k(f"s_lshl_b32 s16, s2, 3\ns_add_u32 s16, s16, s6\ns_lshl_b32 s16, s16, 4\ns_add_u32 s16, s16, {WS_END}\ns_add_u32 s{WS+2}, s{WS+2}, 0x400000")
        k("s_sub_u32 s46, s46, s44\ns_sub_u32 s44, s44, s42\ns_sub_u32 s42, s42, s40\nv_mov_b32 v4, s40\nv_mov_b32 v5, s42\nv_mov_b32 v6, s44\nv_mov_b32 v7, s46\nv_mov_b32 v8, 0")
        k(f"s_mov_b64 exec, 1\nbuffer_store_dwordx4 v[4:7], v8, {ws}, s16 offen")
    k.label(end)
    k("s_endpgm")
    k.label(slow)
    st = sets[0]
    k(f"v_cmp_eq_u32 vcc, 0, v2\nv_mov_b32 v3, 0\ns_nop 1\nv_cndmask_b32 v{Q4[0]}, v3, v{Q4[0]}, vcc\nv_cndmask_b32 v{Q4[0]+1}, v3, v{Q4[0]+1}, vcc")
    k(f"v_mov_b32 v{st['K4']}, s24\nv_mov_b32 v{st['K4']+1}, s25")
    for i in range(4): k(f"v_mov_b32 v{st['V0']+i}, s24\nv_mov_b32 v{st['V1']+i}, s24")
    k("v_mov_b32 v171, 0xff800000\ns_mov_b32 s26, 0")
    def pk(dst, skew):
        k(f"s_sub_u32 s{dst}, s26, {skew}\ns_and_b32 s{dst}, s{dst}, 31\ns_and_b32 s18, s26, 32\ns_or_b32 s{dst}, s{dst}, s18\ns_mul_i32 s{dst}, s{dst}, 2560\ns_add_u32 s{dst}, s{dst}, s12")
    def ldk():
        pk(16, 2)
        k(f"buffer_load_dwordx4 {vr(st['K16'],4)}, v{gL}, {ws}, s16 offen")
        k("s_mov_b64 exec, s[20:21]")
        k(f"buffer_load_dwordx2 {vr(st['K4'],2)}, v{T0}, {ws}, s16 offen offset:2304")
        k("s_mov_b64 exec, -1")
    l1 = k.lab("p1"); k.label(l1)
    ldk()
    k("s_waitcnt vmcnt(0)")
    qk(S[0], st['K16'], st['K4'], 0)
    k("s_nop 11")
    rowmax(S[0], 171, False)
    k(f"s_add_u32 s26, s26, 1\ns_cmp_lg_u32 s26, 64\ns_cbranch_scc1 {l1}")
    setpad(171, 0)
    for i in range(16): k(f"v_mov_b32 v{O+i}, 0")
    k("s_mov_b32 s26, 0")
    l2 = k.lab("p2"); k.label(l2)
    ldk()
    pk(17, 1)
    k("s_mov_b64 exec, s[22:23]")
    k(f"buffer_load_dwordx4 {vr(st['V0'],4)}, v{T1}, {ws}, s17 offen offset:1024")
    k(f"buffer_load_dwordx4 {vr(st['V1'],4)}, v{T1}, {ws}, s17 offen offset:1664")
    k("s_mov_b64 exec, -1\ns_waitcnt vmcnt(0)")
    qk(S[0], st['K16'], st['K4'], 0)
    k("s_nop 11")
    for i in range(16): k(f"v_exp_f32 v{S[0]+i}, v{S[0]+i}")
    k("s_nop 1")
    k(f"v_smfmac_f32_32x32x32_bf16 {vr(O,16)}, {vr(st['V0'],4)}, {vr(S[0],8)}, v{IDX}")
    k(f"v_smfmac_f32_32x32x32_bf16 {vr(O,16)}, {vr(st['V1'],4)}, {vr(S[0]+8,8)}, v{IDX}")
    k(f"s_add_u32 s26, s26, 1\ns_cmp_lg_u32 s26, 64\ns_cbranch_scc1 {l2}")
    k("s_nop 11")
    getl()
    k(f"s_branch {norm}")
    return k
```

```python
from common import *

OPT = {}
WS_WT = 0x1600000
WS_FH = 0x1900000
WS_FO = 0x1908000
WS_STAMP = 0x1A00000
SZ['ws'] = 0x1A00000
LDS_ALL = 163840
XSLOT, WBASE, WSLOT, UOFF = 32768, 98304, 24640, 12320
K_GU, K_QK, K_V, K_G, K_SP = range(5)
GLDS = 147584

def wg_table():
    tab = [None] * 256
    R = OPT.get('R', 1)
    nq = 0
    rot = lambda cb, rb: ((OPT.get('rc', 1) * cb + OPT.get('rr', 1) * rb) % R) * OPT.get('rs', 10) // R
    for half in range(2):
        for qx in range(4):
            x = half + 2 * qx
            L = [(K_GU, (18 * qx + j) // 4, 4 * half + (18 * qx + j) % 4) for j in range(18)]
            L += [(K_V if 3 * qx + j // 4 >= 8 else K_QK, 3 * qx + j // 4, 4 * half + j % 4) for j in range(12)]
            for j, (kd, cb, rb) in enumerate(L):
                tab[x + 8 * j] = (kd, cb, rb, rot(cb, rb) | (nq << 8))
                if kd != K_GU: nq += 1
            tab[x + 8 * 30] = (K_G, 0, 4 * half + qx, nq << 8); nq += 1
            tab[x + 8 * 31] = (K_SP, x, 0, 0)
    return tab

P_X, P_WQKV, P_WO, P_WG, P_WU, P_WD, P_GW, P_OUT, P_DBG, P_WS = 36, 38, 40, 44, 46, 48, 50, 52, 54, 56
SX, SW, SWS = 8, 12, 16
TAB = 60
S_WAVE, S_KIND, S_PAR, S_STATE, S_SLOT, S_DELTA, S_CNT = 3, 4, 5, 6, 7, 20, 21
DUMMY = 15
SC = "sc1"

def stamp(k, i, mode=1):
    if OPT.get('stamp') == mode or (OPT.get('stamp') and i < 4 and mode == 1): k(f"s_memtime {sr(80+2*i,2)}")

def stamps_out(k, n):
    k("s_mov_b64 exec, -1\ns_waitcnt vmcnt(0) lgkmcnt(0)")
    k(f"s_memtime {sr(80+2*(n-1),2)}\ns_waitcnt lgkmcnt(0)")
    k(f"s_lshl_b32 s22, s2, 3\ns_add_u32 s22, s22, s{S_WAVE}\ns_mul_i32 s22, s22, {4*12}\ns_add_u32 s22, s22, {WS_STAMP}\ns_add_u32 s{SWS+2}, s{SWS+2}, 0x400000")
    k("v_mov_b32 v1, 0\nv_mov_b32 v2, s80")
    k(f"s_mov_b64 exec, 1\nbuffer_store_dword v2, v1, {sr(SWS,4)}, s22 offen")
    for i in range(1, n):
        k(f"s_sub_u32 s23, s{80+2*i}, s80\nv_mov_b32 v2, s23\nbuffer_store_dword v2, v1, {sr(SWS,4)}, s22 offen offset:{4*i}")

def prologue(k, tablabel, end):
    k(f"s_cmp_ge_u32 s2, 256\ns_cbranch_scc1 {end}")
    stamp(k, 0)
    k("s_load_dwordx16 s[36:51], s[0:1], 0\ns_load_dwordx4 s[52:55], s[0:1], 64\ns_load_dwordx2 s[56:57], s[0:1], 80")
    k("s_getpc_b64 s[58:59]")
    here = k.lab("pc")
    k.label(here)
    k(f"s_lshl_b32 s22, s2, 4\ns_add_u32 s22, s22, {tablabel}-{here}\ns_add_u32 s22, s58, s22\ns_addc_u32 s23, s59, 0")
    k(f"s_load_dwordx4 {sr(TAB,4)}, s[22:23], 0")
    if not OPT.get('nocodepf'):
        k(f"v_lshlrev_b32 v1, 7, v0\nv_min_u32 v1, {tablabel}-{here}, v1\nglobal_load_dword v{DUMMY}, v1, s[58:59]")
    k(f"v_lshrrev_b32 v1, 6, v0\nv_and_b32 v0, 63, v0\nv_readfirstlane_b32 s{S_WAVE}, v1")
    for r, n in ((SX, 'x'), (SWS, 'ws')):
        k(f"s_mov_b32 s{r+2}, {SZ[n]}\ns_mov_b32 s{r+3}, 0x20000")
    k(f"s_mov_b32 s{SW+3}, 0x20000")

def emit_table(k, tablabel):
    k(".p2align 6")
    k(f".type {tablabel},@object")
    k.label(tablabel)
    for e in wg_table(): k(".long %d, %d, %d, %d" % e)

def arrive_qkv(k, a=86):
    sk = k.lab("nl")
    k(f"v_mov_b32 v{a}, 0\nv_mov_b32 v{a+1}, 1\ns_mov_b64 exec, 1")
    k(f"global_atomic_add v{a+2}, v{a}, v{a+1}, {sr(P_DBG,2)} sc0 sc1\ns_waitcnt vmcnt(0)\nv_cmp_eq_u32 vcc, 0x6f, v{a+2}\ns_nop 1\ns_cmp_eq_u64 vcc, 0\ns_cbranch_scc1 {sk}")
    k(f"global_store_dword v{a}, v{a+1}, {sr(P_DBG,2)} offset:128 sc1")
    k.label(sk)
    k("s_mov_b64 exec, -1")

PF = 72
def pf_setup(k, w, stage):
    k(f"""s_and_b32 s23, s{w}, 3
    s_mov_b32 s{PF}, s{P_WG}
    s_mov_b32 s{PF+1}, s{P_WG+1}
    s_mov_b32 s{PF+2}, {SZ['wg']}
    s_mov_b32 s{PF+3}, 0x20000
    s_movk_i32 s76, 864
    s_movk_i32 s77, 128
    s_mov_b32 s78, {64*3456}
    s_cmp_eq_u32 s23, 3
    s_cselect_b32 s{PF}, s{P_WU}, s{PF}
    s_cselect_b32 s{PF+1}, s{P_WU+1}, s{PF+1}
    s_cmp_eq_u32 s23, 1
    s_cselect_b32 s{PF}, s{P_WQKV}, s{PF}
    s_cselect_b32 s{PF+1}, s{P_WQKV+1}, s{PF+1}
    s_cselect_b32 s{PF+2}, {SZ['wqkv']}, s{PF+2}
    s_cselect_b32 s76, 960, s76
    s_cselect_b32 s78, {64*3840}, s78
    s_cmp_eq_u32 s23, 0
    s_cselect_b32 s{PF}, s{P_X}, s{PF}
    s_cselect_b32 s{PF+1}, s{P_X+1}, s{PF+1}
    s_cselect_b32 s{PF+2}, {SZ['x']}, s{PF+2}
    s_cselect_b32 s76, 10240, s76
    s_cselect_b32 s77, 1280, s77
    s_cselect_b32 s78, 128, s78
    s_mul_i32 s76, s76, s2""")
    if stage: k(f"s_mul_i32 s23, s78, {stage}\ns_add_u32 s76, s76, s23")
    k("s_lshl_b32 s23, s77, 3\ns_sub_u32 s78, s78, s23")
def pf_stage(k):
    for i in range(8): k(f"s_buffer_load_dword s79, {sr(PF,4)}, s76\ns_add_u32 s76, s76, s77")
    k("s_add_u32 s76, s76, s78")

def tj_addr(k):
    k(f"""v_lshlrev_b32 v8, 4, v0
    v_lshrrev_b32 v2, 4, v0
    v_bfe_u32 v3, v0, 2, 2
    v_xor_b32 v4, v2, v3
    v_lshlrev_b32 v4, 6, v4
    v_and_b32 v5, 3, v0
    v_lshl_add_u32 v4, v5, 4, v4
    v_mul_u32_u24 v2, 1280, v2
    v_add_u32 v9, v2, v4
    v_lshrrev_b32 v1, 5, v0
    v_lshlrev_b32 v1, 10, v1
    v_lshl_add_u32 v1, v3, 8, v1
    v_bfe_u32 v2, v0, 4, 1
    v_lshl_add_u32 v1, v2, 5, v1
    v_lshl_add_u32 v1, v5, 3, v1
    v_add_u32 v1, s25, v1""")
    for u in range(4): k(f"v_xor_b32 v2, {u}, v3\nv_lshl_add_u32 v{4+u}, v2, 6, v1")
def tj_load(k, job, dst, lds):
    SJ = 72
    k(f"""s_min_u32 s{job}, s{job}, 739
    s_mul_i32 s76, s{job}, 52429
    s_lshr_b32 s76, s76, 18
    s_mul_i32 s30, s76, 5
    s_sub_u32 s64, s{job}, s30
    s_lshl_b32 s65, s76, 4
    s_movk_i32 s66, {4*1280}
    s_movk_i32 s67, {8*1280}
    s_mov_b32 s{SJ}, s{P_WD}
    s_mov_b32 s{SJ+1}, s{P_WD+1}
    s_mov_b32 s{SJ+2}, {SZ['wd']}
    s_sub_u32 s30, s76, 108
    s_mul_i32 s23, s30, 20
    s_cmp_ge_u32 s76, 108
    s_cselect_b32 s65, s23, s65
    s_cselect_b32 s{SJ}, s{P_WO}, s{SJ}
    s_cselect_b32 s{SJ+1}, s{P_WO+1}, s{SJ+1}
    s_cselect_b32 s{SJ+2}, {SZ['wo']}, s{SJ+2}
    s_sub_u32 s30, s76, 140
    s_mul_i32 s23, s30, 80
    s_add_u32 s23, s23, 16
    s_cmp_ge_u32 s76, 140
    s_cselect_b32 s65, s23, s65
    s_cselect_b32 s66, {40*1280}, s66
    s_cselect_b32 s67, {20*1280}, s67
    s_mul_i32 s65, s65, 1280
    s_lshl_b32 s23, s64, 8
    s_add_u32 s65, s65, s23
    s_add_u32 m0, s25, {lds}
    s_add_u32 s30, s65, s66
    buffer_load_dwordx4 v9, {sr(SJ,4)}, s65 offen lds
    s_add_u32 m0, s25, {lds+1024}
    s_add_u32 s65, s65, s67
    buffer_load_dwordx4 v9, {sr(SJ,4)}, s30 offen lds
    s_add_u32 m0, s25, {lds+2048}
    s_add_u32 s30, s65, s66
    buffer_load_dwordx4 v9, {sr(SJ,4)}, s65 offen lds
    s_add_u32 m0, s25, {lds+3072}
    s_mul_i32 s23, s76, 20
    buffer_load_dwordx4 v9, {sr(SJ,4)}, s30 offen lds
    s_lshl_b32 s30, s64, 2
    s_add_u32 s23, s23, s30
    s_lshl_b32 s23, s23, 10
    s_add_u32 s{dst}, s23, {WS_WT}""")

def loader(k, spare):
    vX = 4
    lw = 22
    k(f"s_sub_u32 s{lw}, s{S_WAVE}, 4")
    k(f"""v_lshrrev_b32 v1, 3, v0
    s_lshl_b32 s23, s{lw}, 3
    v_add_u32 v1, s23, v1
    v_mul_u32_u24 v1, 1280, v1
    s_and_b32 s23, s{lw}, 1
    s_lshl_b32 s23, s23, 2
    v_lshrrev_b32 v2, 4, v0
    v_add_u32 v6, s23, v2
    v_and_b32 v3, 7, v0
    v_xor_b32 v6, v6, v3
    v_lshl_add_u32 v{vX}, v6, 4, v1""")
    k(f"s_and_b32 s23, s{lw}, 1\ns_mul_i32 s23, s23, {32*3456}\ns_movk_i32 s24, {3456-192}\ns_mul_i32 s25, s{lw}, {16*3840}\ns_movk_i32 s26, {3840-320}")
    for j in range(3):
        k(f"v_add_u32 v1, {64*j}, v0\nv_mul_u32_u24 v2, 1366, v1\nv_lshrrev_b32 v2, 14, v2\nv_lshl_add_u32 v1, v1, 4, s23\nv_mad_u32_u24 v{5+j}, v2, s24, v1")
    for j in range(5):
        k(f"v_add_u32 v1, {64*j}, v0\nv_mul_u32_u24 v2, 1639, v1\nv_lshrrev_b32 v2, 15, v2\nv_lshl_add_u32 v1, v1, 4, s25\nv_mad_u32_u24 v{8+j}, v2, s26, v1")
    k(f"s_lshl_b32 s24, s{lw}, 10\ns_mov_b32 s32, 0\ns_mov_b32 s33, {WBASE}")
    k("s_waitcnt lgkmcnt(0)")
    k(f"s_mov_b32 s{SX}, s{P_X}\ns_mov_b32 s{SX+1}, s{P_X+1}\ns_mov_b32 s{SWS}, s{P_WS}\ns_mov_b32 s{SWS+1}, s{P_WS+1}")
    k(f"s_cmp_eq_u32 s{TAB}, {K_SP}\ns_cbranch_scc1 {spare}")
    XO, WO, RX, RW = 26, 27, 34, 35
    k(f"s_mul_i32 s{XO}, s{TAB+2}, {256*1280}\ns_and_b32 s{RX}, s{TAB+3}, 0xff\ns_lshl_b32 s23, s{RX}, 7\ns_add_u32 s{XO}, s{XO}, s23\ns_mov_b32 s{RW}, s{RX}")
    def wb(n):
        k(f"s_waitcnt vmcnt({n})\ns_barrier")
        if OPT.get('bst'): bst()
    def bst():
        k("s_memtime s[96:97]\ns_waitcnt lgkmcnt(0)\ns_sub_u32 s96, s96, s80\ns_mov_b32 m0, s98\ns_add_u32 s98, s98, 1\nv_writelane_b32 v250, s96, m0")
    if OPT.get('bst'):
        k("s_mov_b32 s98, 0\nv_mov_b32 v250, 0")
        bst()
    def issueX():
        k(f"s_add_u32 s28, s32, s24")
        for j in range(8):
            k(f"s_add_u32 m0, s28, {4096*j}\ns_add_u32 s30, s{XO}, {j*40960}")
            k(f"buffer_load_dwordx4 v{vX}, {sr(SX,4)}, s30 offen lds")
        k(f"s_add_u32 s{RX}, s{RX}, 1\ns_cmp_eq_u32 s{RX}, 10\ns_cselect_b32 s{RX}, 0, s{RX}\ns_cselect_b32 s23, -9, 1\ns_lshl_b32 s23, s23, 7\ns_add_u32 s{XO}, s{XO}, s23")
        k(f"s_add_u32 s32, s32, {XSLOT}\ns_cmp_eq_u32 s32, {3*XSLOT}\ns_cselect_b32 s32, 0, s32")
    def issueW(gu):
        rs = 3456 if gu else 3840
        k(f"s_add_u32 s28, s33, s25")
        for j in range(6 if gu else 5):
            k(f"s_add_u32 m0, s28, {1024*j}")
            if gu and j == 3: k(f"s_add_u32 s30, s{WO}, {16*rs}")
            else: k("s_nop 0")
            k(f"buffer_load_dwordx4 v{(5 + j % 3) if gu else (8 + j)}, {sr(SW,4)}, s{30 if gu and j >= 3 else WO} offen lds")
        k(f"s_add_u32 s{RW}, s{RW}, 1\ns_cmp_eq_u32 s{RW}, 10\ns_cselect_b32 s{RW}, 0, s{RW}\ns_cselect_b32 s23, -9, 1\ns_mul_i32 s23, s23, {64*rs}\ns_add_u32 s{WO}, s{WO}, s23")
        k(f"s_xor_b32 s33, s33, {WBASE ^ (WBASE + WSLOT)}")
    PFN = OPT.get('pfn', 0)
    lq, ldone = k.lab("ldq"), k.lab("lddone")
    k(f"s_cmp_lg_u32 s{TAB}, {K_GU}\ns_cbranch_scc1 {lq}")
    for gu in (True, False):
        rs = 3456 if gu else 3840
        if gu:
            k(f"s_cmp_ge_u32 s{lw}, 2\ns_cselect_b32 s{SW}, s{P_WU}, s{P_WG}\ns_cselect_b32 s{SW+1}, s{P_WU+1}, s{P_WG+1}\ns_cselect_b32 s25, {UOFF}, 0\ns_mov_b32 s{SW+2}, {SZ['wg']}")
            k(f"s_and_b32 s23, s{lw}, 1\ns_mul_i32 s23, s23, 6144\ns_add_u32 s25, s25, s23")
        else:
            k.label(lq)
            k(f"s_mov_b32 s{SW}, s{P_WQKV}\ns_mov_b32 s{SW+1}, s{P_WQKV+1}\ns_mov_b32 s{SW+2}, {SZ['wqkv']}\ns_mul_i32 s25, s{lw}, 5120")
        k(f"s_mul_i32 s{WO}, s{TAB+1}, {192 if gu else 320}\ns_mul_i32 s23, s{RW}, {64*rs}\ns_add_u32 s{WO}, s{WO}, s23")
        nW = 6 if gu else 5
        l = k.lab("ll"); l1 = k.lab("l1"); l2 = k.lab("l2"); l3 = k.lab("l3")
        k(f"s_mov_b32 s{S_CNT}, 0")
        k.label(l)
        issueW(gu)
        k(f"s_cmp_eq_u32 s{S_CNT}, 1\ns_cbranch_scc0 {l1}")
        wb(nW)
        issueX()
        k.label(l1)
        k(f"s_cmp_eq_u32 s{S_CNT}, 9\ns_cbranch_scc1 {l3}")
        issueX()
        if PFN:
            l4, l5 = k.lab("l4"), k.lab("l5")
            k(f"s_cmp_lg_u32 s{S_CNT}, 0\ns_cbranch_scc1 {l4}")
            pf_setup(k, lw, PFN)
            k.label(l4)
            k(f"s_cmp_lg_u32 s{S_CNT}, {10-PFN}\ns_cbranch_scc1 {l5}")
            k(f"""s_cmp_eq_u32 s{lw}, 3
            s_cselect_b32 s{PF}, s{P_WO}, s{P_WD}
            s_cselect_b32 s{PF+1}, s{P_WO+1}, s{P_WD+1}
            s_mov_b32 s{PF+2}, {SZ['wd']}
            s_cselect_b32 s{PF+2}, {SZ['wo']}, s{PF+2}
            s_cselect_b32 s23, 1, 3
            s_cselect_b32 s76, 0, s{lw}
            s_mul_i32 s23, s23, s2
            s_add_u32 s76, s76, s23
            s_mul_i32 s76, s76, {24*128}
            s_movk_i32 s77, 128
            s_mov_b32 s78, 0""")
            k.label(l5)
            pf_stage(k)
        k(f"s_cmp_eq_u32 s{S_CNT}, 0\ns_cbranch_scc1 {l2}")
        wb(8)
        k.label(l2)
        k(f"s_add_u32 s{S_CNT}, s{S_CNT}, 1\ns_branch {l}")
        k.label(l3)
        if PFN: pf_stage(k)
        wb(0)
        if gu: k(f"s_waitcnt lgkmcnt(0)\ns_branch {ldone}")
    k(f"s_waitcnt lgkmcnt(0)\ns_lshl_b32 s25, s{lw}, 13\ns_add_u32 s25, s25, {XSLOT}\ns_mov_b32 s75, 0x20000")
    stamp(k, 2, 2)
    tj_addr(k)
    k(f"s_lshr_b32 s21, s{TAB+3}, 8\ns_lshl_b32 s21, s21, 2\ns_add_u32 s21, s21, s{lw}\ns_lshl_b32 s21, s21, 1\ns_add_u32 s27, s21, 1")
    tj_load(k, 21, 34, 0)
    tj_load(k, 27, 35, 4096)
    for jb in range(2):
        k(f"s_waitcnt vmcnt({4 if jb == 0 else 4})")
        for u in range(4): k(f"ds_read_b64_tr_b16 {vr(16+16*jb+4*u,2)}, v{4+u} offset:{4096*jb}\nds_read_b64_tr_b16 {vr(18+16*jb+4*u,2)}, v{4+u} offset:{4096*jb+2048}")
        k("s_waitcnt lgkmcnt(0)")
        for u in range(4): k(f"buffer_store_dwordx4 {vr(16+16*jb+4*u,4)}, v8, {sr(SWS,4)}, s{34+jb} offen offset:{1024*u} {SC}")
    stamp(k, 4, 2)
    k("s_waitcnt vmcnt(0)")
    stamp(k, 5, 2)
    if OPT.get('upto', 4) >= 3:
        k("s_barrier")
        stamp(k, 6, 2)
        sk = k.lab("na")
        k(f"s_cmp_lg_u32 s{lw}, 0\ns_cbranch_scc1 {sk}")
        arrive_qkv(k)
        stamp(k, 7, 2)
        k.label(sk)
    k.label(ldone)
    if OPT.get('bst'):
        k(f"s_lshl_b32 s23, s2, 7\ns_add_u32 s23, s23, {WS_STAMP + (1 << 20)}\ns_add_u32 s{SWS+2}, s{SWS+2}, 0x400000\nv_lshlrev_b32 v1, 2, v0\ns_mov_b64 exec, 0xffffffff")
        k(f"buffer_store_dword v250, v1, {sr(SWS,4)}, s23 offen\ns_waitcnt vmcnt(0)\ns_mov_b64 exec, -1\ns_sub_u32 s{SWS+2}, s{SWS+2}, 0x400000")

ACC = 64
XA = [4, 5, 6, 7]; WA = 8
XF = [16, 32]; WF = 48
ZR = 12
ET = 48
def zero_acc(base, n):
    return [f"v_mfma_f32_32x32x8_bf16 {vr(base+16*i,16)}, {vr(ZR,2)}, {vr(ZR,2)}, 0" for i in range(n)]

def gemm_loop(k, gu, vt):
    NT, NU = (4, 3) if gu else (2, 5)
    xf = XF if gu else [16, 24]; wf = WF if gu else 32
    rowb, ub = (192, 32) if gu else (320, 64)
    A = lambda i, j: ACC + 16 * (j * NT + i)
    xr = lambda kk: [f"ds_read_b128 {vr(xf[kk%2]+4*i,4)}, v{XA[kk%4]} offset:{4096*i}" for i in range(NT)]
    wr = lambda kk, j: [f"ds_read_b64_tr_b16 {vr(wf+4*j+2*jj,2)}, v{WA} offset:{(16*(kk%4)+4*jj)*rowb + ub*j}" for jj in range(2)]
    k("\n".join(xr(0)))
    for j in range(NU): k("\n".join(wr(0, j)))
    k(f"s_mov_b32 s{S_CNT}, 10\ns_mov_b32 s{S_SLOT}, 0\ns_mov_b32 s69, {WSLOT}")
    loop = k.lab("gl")
    k(".p2align 6")
    k.label(loop)
    jb = 0 if gu else 1
    for kk in range(4):
        k(f"s_waitcnt lgkmcnt({2*(NU-1)})")
        pend = xr(kk + 1)
        for j in range(NU):
            if j > 0 and not (kk == 3 and j > jb):
                k(f"s_waitcnt lgkmcnt({2*(NU-1) + NT if kk < 3 else 2*(NU-1-j)})")
            for i in range(NT):
                a, b = vr(wf + 4*j, 4), vr(xf[kk%2] + 4*i, 4)
                if vt: a, b = b, a
                k(f"v_mfma_f32_32x32x16_bf16 {vr(A(i,j),16)}, {a}, {b}, {vr(A(i,j),16)}")
                if i == NT - 1: pend = pend + wr(kk + 1, j)
                if kk == 3 and j == jb and i == NT - 1:
                    k(f"v_add_u32 v{XA[0]}, s{S_DELTA}, v{XA[0]}\nv_add_u32 v{WA}, s69, v{WA}\ns_sub_u32 s69, 0, s69")
                    nb = k.lab("nb")
                    k(f"s_waitcnt lgkmcnt(0)\ns_cmp_eq_u32 s{S_CNT}, 0\ns_cbranch_scc1 {nb}\ns_barrier")
                    k.label(nb)
                if not (kk == 3 and (j < jb or (j == jb and i < NT - 1))):
                    n = len(pend) if (j == NU - 1 and i == NT - 1) else min(len(pend), 2)
                    k("\n".join(pend[:n])); pend = pend[n:]
                if kk == 2 and j == NU - 1 and i == 0:
                    k(f"s_add_u32 s{S_SLOT}, s{S_SLOT}, 1\ns_cmp_eq_u32 s{S_SLOT}, 3\ns_cselect_b32 s{S_DELTA}, s70, s71\ns_cselect_b32 s{S_SLOT}, 0, s{S_SLOT}\ns_sub_u32 s{S_CNT}, s{S_CNT}, 1")
                if kk == 3 and j == NU - 1 and i == 0:
                    for a in XA[1:]: k(f"v_add_u32 v{a}, s{S_DELTA}, v{a}")
    k(f"s_cmp_lg_u32 s{S_CNT}, 0\ns_cbranch_scc1 {loop}")

def consumer(k, spare, pre_epilogue=None):
    ws = sr(SWS, 4)
    w = S_WAVE
    k("v_and_b32 v1, 31, v0\nv_lshrrev_b32 v2, 5, v0")
    k(f"v_mov_b32 v{ZR}, 0\nv_mov_b32 v{ZR+1}, 0")
    k(f"s_mov_b32 s70, {(-2*XSLOT) & 0xffffffff}\ns_mov_b32 s71, {XSLOT}")
    k("\n".join(zero_acc(ACC, 12)))
    k(f"v_bfe_u32 v3, v1, 1, 3\nv_xor_b32 v3, v3, v2\nv_lshlrev_b32 v56, 7, v1")
    for kk in range(4):
        k(f"v_xor_b32 v57, {2*kk}, v3\nv_lshl_add_u32 v{XA[kk]}, v57, 4, v56")
    k(f"v_bfe_u32 v3, v0, 2, 2\nv_lshl_add_u32 v56, v2, 3, v3\nv_bfe_u32 v57, v0, 4, 1\nv_and_b32 v58, 3, v0\nv_lshlrev_b32 v58, 3, v58")
    k(f"s_and_b32 s23, s{w}, 1\ns_mul_i32 s23, s23, 96\ns_add_u32 s23, s23, {WBASE}\ns_movk_i32 s24, 192\ns_movk_i32 s25, {UOFF}\ns_movk_i32 s26, 320")
    k(f"v_mad_u32_u24 v{WA}, v56, s24, v58\nv_mad_u32_u24 v{WA}, v57, s25, v{WA}\nv_add_u32 v{WA}, s23, v{WA}")
    k("v_lshlrev_b32 v59, 7, v0")
    k(f"v_mad_u32_u24 v9, v56, s26, v58\nv_lshl_add_u32 v9, v57, 5, v9\nv_add_u32 v9, {WBASE}, v9")
    k("s_waitcnt lgkmcnt(0)")
    k(f"s_mov_b32 s{SWS}, s{P_WS}\ns_mov_b32 s{SWS+1}, s{P_WS+1}")
    if OPT.get('xpf', 1):
        k(f"s_mov_b32 s{SX}, s{P_X}\ns_mov_b32 s{SX+1}, s{P_X+1}\ns_lshl_b32 s23, s2, 2\ns_add_u32 s23, s23, s{w}\ns_mul_i32 s23, s23, 2560\ns_mov_b64 exec, 0xfffff")
        k(f"buffer_load_dword v{DUMMY}, v59, {sr(SX,4)}, s23 offen\ns_mov_b64 exec, -1")
    if OPT.get('wpf', 0):
        n = OPT['wpf']
        k(f"""s_mov_b32 s{SW}, s{P_WG}
        s_mov_b32 s{SW+1}, s{P_WG+1}
        s_movk_i32 s24, {864*n}
        s_cmp_eq_u32 s{w}, 1
        s_cselect_b32 s{SW}, s{P_WQKV}, s{SW}
        s_cselect_b32 s{SW+1}, s{P_WQKV+1}, s{SW+1}
        s_cselect_b32 s24, {960*n}, s24
        s_cmp_eq_u32 s{w}, 3
        s_cselect_b32 s{SW}, s{P_WU}, s{SW}
        s_cselect_b32 s{SW+1}, s{P_WU+1}, s{SW+1}
        s_mul_i32 s23, s24, s2
        s_add_u32 s{SW+2}, s23, s24
        s_cmp_eq_u32 s{w}, 0
        s_cselect_b32 s{SW+2}, 0, s{SW+2}
        buffer_load_dword v{DUMMY}, v59, {sr(SW,4)}, s23 offen""")
    if OPT.get('pfn', 0):
        pf_setup(k, w, 0)
        l = k.lab("pf")
        k(f"s_mov_b32 s{S_CNT}, {OPT.get('pfn', 0)}")
        k.label(l)
        pf_stage(k)
        k(f"s_sub_u32 s{S_CNT}, s{S_CNT}, 1\ns_cmp_lg_u32 s{S_CNT}, 0\ns_cbranch_scc1 {l}")
    done, lq, lv, qd, lg = k.lab("cdone"), k.lab("cq"), k.lab("cv"), k.lab("qd"), k.lab("cg")
    k(f"s_cmp_eq_u32 s{TAB}, {K_SP}\ns_cbranch_scc1 {spare}\ns_cmp_lg_u32 s{TAB}, {K_GU}\ns_cbranch_scc1 {lq}")
    k(f"s_lshr_b32 s23, s{w}, 1\ns_lshl_b32 s23, s23, 14")
    for a in XA: k(f"v_add_u32 v{a}, s23, v{a}")
    k("s_barrier")
    stamp(k, 1)
    k("s_waitcnt lgkmcnt(0)")
    gemm_loop(k, True, False)
    stamp(k, 2)
    k(f"s_lshl_b32 s31, s{TAB+2}, 1\ns_lshr_b32 s26, s{w}, 1\ns_add_u32 s31, s31, s26\ns_mul_i32 s34, s31, {4*108}\ns_lshl_b32 s29, s{TAB+1}, 1\ns_and_b32 s27, s{w}, 1\ns_add_u32 s29, s29, s27\ns_mul_i32 s29, s29, 3")
    k(f"s_add_u32 s34, s34, s29\ns_lshl_b32 s34, s34, 10\ns_add_u32 s34, s34, {WS_HF}\ns_mov_b32 s32, {f32hex(-LOG2E)}\nv_lshlrev_b32 v14, 4, v0")
    k("s_waitcnt lgkmcnt(0)")
    n = 0
    for i in range(4):
        if i == OPT.get('early', 2) and pre_epilogue: pre_epilogue(k)
        for j in range(3):
            a = ACC + 16 * (j * 4 + i); t = a + 8
            for e in range(0, 8, 2): k(f"v_pk_mul_f32 {vr(a+e,2)}, {vr(a+e,2)}, s[32:33] op_sel_hi:[1,0]")
            for e in range(8): k(f"v_exp_f32 v{a+e}, v{a+e}")
            for e in range(0, 8, 2): k(f"v_pk_add_f32 {vr(a+e,2)}, {vr(a+e,2)}, 1.0 op_sel_hi:[1,0]")
            for e in range(8): k(f"v_rcp_f32 v{a+e}, v{a+e}")
            for e in range(0, 8, 2): k(f"v_pk_mul_f32 {vr(a+e,2)}, {vr(a+e,2)}, {vr(a+8+e,2)}")
            for e in range(4): k(f"v_cvt_pk_bf16_f32 v{t+e}, v{a+2*e}, v{a+2*e+1}")
            k(f"buffer_store_dwordx4 {vr(t,4)}, v14, {ws}, s34 offen offset:{1024*j} {SC}")
        if i < 3: k(f"s_add_u32 s34, s34, {108*1024}")
    k(f"s_branch {done}")
    k.label(lq)
    k(f"s_lshl_b32 s23, s{w}, 13\nv_mov_b32 v{WA}, v9")
    for a in XA: k(f"v_add_u32 v{a}, s23, v{a}")
    k(f"s_lshl_b32 s65, s{TAB+2}, 3\ns_lshl_b32 s23, s{w}, 1\ns_add_u32 s65, s65, s23\ns_and_b32 s29, s{TAB+1}, 3")
    k(f"s_cmp_eq_u32 s{TAB}, {K_G}\ns_cbranch_scc1 {lg}\ns_cmp_eq_u32 s{TAB}, {K_V}\ns_cbranch_scc1 {lv}")
    for vt in (False, True):
        if vt:
            k.label(lv)
            k(f"s_movk_i32 s43, 2560\ns_mov_b32 s66, {WS_KV + 1280}\ns_mov_b32 s67, 1\ns_mov_b32 s64, {64*2560}\ns_mov_b32 s42, {64*2560-640}")
            k("v_and_b32 v3, 3, v1\nv_lshlrev_b32 v3, 4, v3\nv_lshl_add_u32 v3, v2, 6, v3\nv_lshrrev_b32 v58, 2, v1")
            for u in range(5):
                k(f"v_add_u32 v56, {8*u}, v58\nv_mul_u32_u24 v57, 205, v56\nv_lshrrev_b32 v57, 10, v57\nv_lshl_add_u32 v56, v56, 7, v3\nv_mad_u32_u24 v{224+u}, v57, s42, v56")
        else:
            k(f"""s_mov_b32 s64, {64*1280}
            s_mov_b32 s42, {f32hex(QSCALE)}
            s_movk_i32 s43, 1280
            s_mov_b32 s66, {WS_QF}
            s_cmp_ge_u32 s{TAB+1}, 4
            s_cselect_b32 s64, {64*2560}, s64
            s_cselect_b32 s42, 1.0, s42
            s_cselect_b32 s43, 2560, s43
            s_cselect_b32 s66, {WS_KV}, s66
            s_cselect_b32 s67, 2, 0
            s_cselect_b64 vcc, -1, 0
            v_and_b32 v3, 0x13, v1
            v_and_b32 v56, 4, v1
            v_lshl_or_b32 v3, v56, 1, v3
            v_bfe_u32 v56, v1, 3, 1
            v_lshl_or_b32 v3, v56, 2, v3
            v_cndmask_b32 v3, v1, v3, vcc
            v_lshlrev_b32 v3, 3, v3
            v_lshl_add_u32 v224, v2, 8, v3
            s_sub_u32 s23, s64, 1024
            v_mad_u32_u24 v225, v2, s23, v3""")
        k(f"s_lshl_b32 s29, s29, 3\ns_mul_i32 s29, s29, s64\ns_add_u32 s66, s66, s29")
        for i in range(2):
            k(f"s_add_u32 s28, s65, {i}\ns_sub_u32 s29, s28, s67\ns_and_b32 s29, s29, 31\ns_and_b32 s28, s28, 32\ns_or_b32 s28, s28, s29\ns_mul_i32 s28, s28, s43\ns_add_u32 s{76+i}, s28, s66")
        k("s_barrier")
        stamp(k, 1)
        k("s_waitcnt lgkmcnt(0)")
        gemm_loop(k, False, vt)
        stamp(k, 2)
        k("s_waitcnt lgkmcnt(0)\ns_nop 7")
        n = 0
        for i in range(2):
            hcur = 0
            for u in range(5):
                a = ACC + 16 * (u * 2 + i)
                if vt:
                    for h in range(2):
                        t = ET + 4 * (n % 4); n += 1
                        for e in range(4): k(f"v_cvt_pk_bf16_f32 v{t+e}, v{a+8*h+2*e}, v{a+8*h+2*e+1}")
                        k(f"buffer_store_dwordx4 {vr(t,4)}, v{224+u}, {ws}, s{76+i} offen offset:{640*h} {SC}")
                else:
                    for q4 in range(4):
                        t = ET + 2 * (n % 8); n += 1
                        gi = 8 * u + 2 * q4; hd, G = gi // 5, gi % 5
                        while hcur < hd: k(f"s_add_u32 s{76+i}, s{76+i}, s64"); hcur += 1
                        for e in (0, 2): k(f"v_pk_mul_f32 {vr(a+4*q4+e,2)}, {vr(a+4*q4+e,2)}, s[42:43] op_sel_hi:[1,0]")
                        k(f"v_cvt_pk_bf16_f32 v{t}, v{a+4*q4}, v{a+4*q4+1}\nv_cvt_pk_bf16_f32 v{t+1}, v{a+4*q4+2}, v{a+4*q4+3}")
                        k(f"buffer_store_dwordx2 {vr(t,2)}, v{225 if G == 4 else 224}, {ws}, s{76+i} offen offset:{256*G} {SC}")
        k(f"s_branch {qd}")
    k.label(lg)
    k(f"s_mov_b32 s{SW}, s{P_GW}\ns_mov_b32 s{SW+1}, s{P_GW+1}\ns_mov_b32 s{SW+2}, {SZ['gw']}\ns_mov_b32 m0, {GLDS}\nv_lshlrev_b32 v3, 4, v0\nv_lshlrev_b32 v{WA}, 4, v2\nv_add_u32 v{WA}, {GLDS}, v{WA}")
    k(f"buffer_load_dwordx4 v3, {sr(SW,4)}, 0 offen lds\nbuffer_load_dwordx4 v3, {sr(SW,4)}, 0 offen offset:1024 lds")
    k(f"s_mov_b32 s{S_CNT}, 10\ns_mov_b32 s{S_SLOT}, 0\ns_waitcnt vmcnt(0) lgkmcnt(0)\ns_barrier")
    l = k.lab("gg"); k.label(l)
    for kk in range(4):
        k(f"ds_read_b128 {vr(16+12*kk,4)}, v{XA[kk]}\nds_read_b128 {vr(20+12*kk,4)}, v{XA[kk]} offset:4096\nds_read_b128 {vr(24+12*kk,4)}, v{WA} offset:{32*kk}")
    k(f"s_add_u32 s{S_SLOT}, s{S_SLOT}, 1\ns_cmp_eq_u32 s{S_SLOT}, 3\ns_cselect_b32 s{S_DELTA}, s70, s71\ns_cselect_b32 s{S_SLOT}, 0, s{S_SLOT}\ns_sub_u32 s{S_CNT}, s{S_CNT}, 1")
    nb = k.lab("nb")
    k(f"s_waitcnt lgkmcnt(0)\ns_cmp_eq_u32 s{S_CNT}, 0\ns_cbranch_scc1 {nb}\ns_barrier")
    k.label(nb)
    for kk in range(4):
        for i in range(2): k(f"v_mfma_f32_32x32x16_bf16 {vr(ACC+16*i,16)}, {vr(24+12*kk,4)}, {vr(16+12*kk+4*i,4)}, {vr(ACC+16*i,16)}")
        k(f"v_add_u32 v{XA[kk]}, s{S_DELTA}, v{XA[kk]}")
    k(f"v_add_u32 v{WA}, 128, v{WA}\ns_cmp_lg_u32 s{S_CNT}, 0\ns_cbranch_scc1 {l}")
    k(f"s_mov_b32 s32, {f32hex(-LOG2E)}\ns_lshl_b32 s28, s65, 7\ns_add_u32 s28, s28, {WS_G}\nv_lshlrev_b32 v3, 2, v1\ns_nop 7")
    for i in range(2):
        a = ACC + 16 * i
        k(f"v_mul_f32 v{a}, s32, v{a}\nv_exp_f32 v{a}, v{a}\ns_nop 0\nv_add_f32 v{a}, 1.0, v{a}\nv_rcp_f32 v{a}, v{a}\ns_nop 0\nbuffer_store_dword v{a}, v3, {ws}, s28 offen offset:{128*i} {SC}")
    k.label(qd)
    stamp(k, 4, 2)
    if OPT.get('upto', 4) >= 3:
        k("s_waitcnt vmcnt(0)")
        stamp(k, 5, 2)
        k("s_barrier")
        stamp(k, 6, 2)
        if pre_epilogue: pre_epilogue(k)
    k.label(done)

def spare_wg(k):
    ws = sr(SWS, 4)
    k(f"s_lshl_b32 s22, s{TAB+1}, 3\ns_add_u32 s22, s22, s{S_WAVE}\nv_mov_b32 v12, 0")
    k(f"s_lshl_b32 s24, s22, 9\ns_add_u32 s23, s24, {WS_FH}\ns_add_u32 s24, s24, {WS_FO}\nv_lshlrev_b32 v2, 7, v0\ns_mov_b64 exec, 15")
    k(f"buffer_store_dword v12, v2, {ws}, s23 offen {SC}\nbuffer_store_dword v12, v2, {ws}, s24 offen {SC}\ns_mov_b64 exec, -1")
    k("s_waitcnt vmcnt(0) lgkmcnt(0)")
    if OPT.get('upto', 4) >= 3:
        k("s_barrier")
        sk = k.lab("na")
        k(f"s_cmp_lg_u32 s{S_WAVE}, 0\ns_cbranch_scc1 {sk}")
        arrive_qkv(k)
        k.label(sk)
```

```python
from fz_a import *
import fz_a

TS = 3072; CH = 8 * TS; RB = 32768
aK16, aK4, aV0, aV1, gL, T0, T1, IDX = 4, 5, 6, 7, 8, 9, 10, 11
Q16 = [16, 20]; Q4 = [24, 26]
KS = [dict(K16=28, K4=32, V0=36, V1=40), dict(K16=44, K4=34, V0=48, V1=52)]
KT16, KT4, GQ, GO = 56, 60, 62, 63
DS = [64, 80, 96]; DA = [112, 128, 144]; S = [160, 176, 192, 208]; O = [224, 240]
HEAD, QT, KQ, GRP = 4, 5, 6, 7
M32, M20, ONES, K1 = 64, 66, 68, 69
KVB, HALF, QB, DSRC, DLDS, DSLOT, DELTA, CNT, SH, SWT = 70, 71, 72, 73, 74, 75, 76, 77, 78, 79
TB, NB, BLK, WI = 26, 27, 24, 25
LD = "sc1"
SPIN = 400000
ws = sr(SWS, 4)

def kv_dma(src=None):
    src = src or f"s{DSRC}"
    return [f"buffer_load_dwordx4 v{gL}, {ws}, {src} offen {LD} lds",
            f"buffer_load_dwordx4 v{gL}, {ws}, {src} offen offset:1024 {LD} lds",
            f"s_mov_b64 exec, {sr(M32,2)}\nbuffer_load_dwordx4 v{gL}, {ws}, {src} offen offset:2048 {LD} lds\ns_mov_b64 exec, -1"]

def attn_early(k):
    k(f"""s_and_b32 s{HEAD}, s2, 7
    s_lshl_b32 s{HEAD}, s{HEAD}, 2
    s_lshr_b32 s23, s2, 6
    s_add_u32 s{HEAD}, s{HEAD}, s23
    s_bfe_u32 s{TB}, s2, 0x30003
    s_lshl_b32 s{TB}, s{TB}, 3
    s_and_b32 s{KQ}, s{S_WAVE}, 3
    s_lshr_b32 s{GRP}, s{S_WAVE}, 2
    s_lshl_b32 s{QT}, s{KQ}, 1
    s_add_u32 s{QT}, s{QT}, s{TB}
    s_and_b32 s{NB}, s{HEAD}, 3
    s_lshr_b32 s23, s{HEAD}, 2
    s_add_u32 s{TB}, s{TB}, s23
    s_mul_i32 s{KVB}, s{HEAD}, {64*2560}
    s_add_u32 s{KVB}, s{KVB}, {WS_KV}
    s_mul_i32 s{HALF}, s{GRP}, {32*2560}
    s_add_u32 s{HALF}, s{HALF}, s{KVB}
    s_lshl_b32 s{QB}, s{HEAD}, 6
    s_add_u32 s{QB}, s{QB}, s{QT}
    s_mul_i32 s{QB}, s{QB}, 1280
    s_add_u32 s{QB}, s{QB}, {WS_QF}
    s_mul_i32 s{DSRC}, s{KQ}, 2560
    s_add_u32 s{DSRC}, s{DSRC}, s{HALF}
    s_mul_i32 s{DLDS}, s{S_WAVE}, {TS}
    s_add_u32 s{DLDS}, s{DLDS}, {RB}
    s_mov_b32 s{M32}, -1
    s_mov_b32 s{M32+1}, 0
    s_mov_b32 s{M20}, 0x000fffff
    s_mov_b32 s{M20+1}, 0x000fffff
    s_mov_b32 s{ONES}, 0x3f803f80
    s_mov_b32 s{K1}, 0x00003f80
    v_and_b32 v1, 31, v0
    v_lshrrev_b32 v2, 5, v0
    v_lshlrev_b32 v{gL}, 4, v0
    v_lshlrev_b32 v{T0}, 3, v0
    v_and_b32 v3, 3, v1
    v_lshlrev_b32 v3, 4, v3
    v_lshl_add_u32 v3, v2, 6, v3
    v_lshrrev_b32 v{T1}, 2, v1
    v_lshl_add_u32 v{T1}, v{T1}, 7, v3
    v_lshlrev_b32 v4, 5, v0
    v_lshlrev_b32 v5, 2, v1""")
    for q in range(2): k(f"v_mov_b32 v{Q4[q]}, 0\nv_mov_b32 v{Q4[q]+1}, 0")
    for r in (KS[0]['K4'], KS[1]['K4'], KT4): k(f"v_mov_b32 v{r}, s{ONES}\nv_mov_b32 v{r+1}, s{K1}")
    for i in range(4): k(f"v_mov_b32 v{KS[0]['V0']+i}, s{ONES}\nv_mov_b32 v{KS[0]['V1']+i}, s{ONES}")
    k(f"s_add_u32 s28, s{KVB}, {30*2560}\ns_add_u32 s29, s{HALF}, {30*2560}\ns_add_u32 s30, s{HALF}, {31*2560}")
    k(f"s_add_u32 s31, s{QT}, s{GRP}\ns_lshl_b32 s31, s31, 7\ns_add_u32 s31, s31, {WS_G}\ns_lshl_b32 s22, s{TB}, 7\ns_add_u32 s22, s22, {WS_G}")
    pl = k.lab("pq")
    np_, p1 = k.lab("np"), k.lab("p1")
    k(f"s_cmp_lg_u32 s{S_WAVE}, 4\ns_cbranch_scc1 {np_}\ns_mov_b64 exec, 1\ns_mov_b32 s21, {SPIN}\ns_branch {p1}")
    k.label(pl)
    k(f"s_sleep {OPT.get('slp', 6)}")
    k.label(p1)
    k(f"global_load_dword v3, v4, {sr(P_DBG,2)} offset:128 sc1\ns_sub_u32 s21, s21, 1\ns_waitcnt vmcnt(0)\nv_cmp_ne_u32 vcc, 1, v3\ns_cselect_b64 exec, 0, exec\ns_and_b64 vcc, vcc, exec\ns_cbranch_scc1 {pl}")
    k("s_mov_b64 exec, -1")
    k.label(np_)
    stamp(k, 8, 2)
    k("s_barrier")
    stamp(k, 9, 2)
    x2 = lambda r, so, off: k(f"buffer_load_dwordx2 {vr(r,2)}, v{T0}, {ws}, {so} offen offset:{off} {LD}")
    for q in range(2): x2(Q16[q], f"s{QB}", 1280*q); x2(Q16[q]+2, f"s{QB}", 1280*q + 512)
    x2(KS[1]['K16'], "s28", 0); x2(KS[1]['K16']+2, "s28", 512)
    k(f"s_mov_b64 exec, {sr(M32,2)}")
    x2(Q4[0], f"s{QB}", 1024); x2(Q4[1], f"s{QB}", 2304); x2(KS[1]['K4'], "s28", 1024)
    x2(KT4, "s29", 1024); x2(KS[0]['K4'], "s30", 1024)
    k(f"s_mov_b64 exec, {sr(M20,2)}")
    k(f"buffer_load_dwordx4 {vr(KS[0]['V0'],4)}, v{T1}, {ws}, s30 offen offset:1280 {LD}")
    k(f"buffer_load_dwordx4 {vr(KS[0]['V1'],4)}, v{T1}, {ws}, s30 offen offset:1920 {LD}")
    k("s_mov_b64 exec, -1")
    x2(KT16, "s29", 0); x2(KT16+2, "s29", 512); x2(KS[0]['K16'], "s30", 0); x2(KS[0]['K16']+2, "s30", 512)
    k(f"buffer_load_dword v{GQ}, v5, {ws}, s31 offen {LD}\nbuffer_load_dword v{GO}, v5, {ws}, s22 offen {LD}")
    k(f"s_mov_b32 m0, s{DLDS}\ns_nop 0\n" + "\n".join(kv_dma()))
    k(f"s_add_u32 s{DSRC}, s{DSRC}, {4*2560}\ns_add_u32 m0, s{DLDS}, {CH}\ns_nop 0\n" + "\n".join(kv_dma()))
    k(f"s_add_u32 s{DSRC}, s{DSRC}, {4*2560}")
    k(f"v_mul_u32_u24 v3, {TS}, v0\nv_mov_b32 v4, s{ONES}\nv_mov_b32 v5, s{ONES}\nv_mov_b32 v6, s{ONES}\nv_mov_b32 v7, s{ONES}\ns_mov_b64 exec, 0xffffff")
    k(f"ds_write_b128 v3, v[4:7] offset:{RB+2560}\nv_mov_b32 v7, s{K1}\nds_write_b64 v3, v[6:7] offset:{RB+2576}\ns_mov_b64 exec, -1")
    k(f"s_mul_i32 s23, s{GRP}, {4*TS}\ns_add_u32 s23, s23, {RB}\ns_add_u32 s22, s23, 2576")
    k(f"v_add_u32 v{aK16}, s23, v{T0}\nv_mov_b32 v3, s22\nv_add_u32 v{aK4}, 1024, v{aK16}\nv_cmp_eq_u32 vcc, 0, v2\ns_add_u32 s22, s23, 2560\ns_add_u32 s23, s23, 1280")
    k(f"v_cndmask_b32 v{aK4}, v3, v{aK4}, vcc\nv_add_u32 v{aV0}, s23, v{T1}\nv_mov_b32 v3, s22\nv_cmp_gt_u32 vcc, 20, v1\nv_add_u32 v{aV1}, 640, v{aV0}")
    k(f"v_mov_b32 v{IDX}, 0xdddddddd\nv_cndmask_b32 v{aV0}, v3, v{aV0}, vcc\nv_cndmask_b32 v{aV1}, v3, v{aV1}, vcc")

def qk(k, sb, k16, k4, q):
    k(f"v_mfma_f32_32x32x16_bf16 {vr(sb,16)}, {vr(k16,4)}, {vr(Q16[q],4)}, 0")
    k(f"v_mfma_f32_32x32x8_bf16 {vr(sb,16)}, {vr(k4,2)}, {vr(Q4[q],2)}, {vr(sb,16)}")
def rowmax(k, sb, dst, first):
    if first:
        k(f"v_max3_f32 v{dst}, v{sb}, v{sb+1}, v{sb+2}")
        rest = list(range(3, 16)) + [0]
    else:
        rest = list(range(16))
    for i in range(0, len(rest), 2):
        k(f"v_max3_f32 v{dst}, v{dst}, v{sb+rest[i]}, v{sb+rest[i+1]}")
def setpad(k, m, q, a, b, c):
    k(f"v_mov_b32 v{a}, v{m}\ns_nop 1\nv_permlane32_swap_b32 v{m}, v{a}\ns_nop 1\nv_max_f32 v{m}, v{m}, v{a}")
    k(f"""v_xor_b32 v{m}, 0x80000000, v{m}
    v_and_b32 v{a}, 0xffff0000, v{m}
    v_sub_f32 v{b}, v{m}, v{a}
    v_and_b32 v{c}, 0xffff0000, v{b}
    v_sub_f32 v{b}, v{b}, v{c}
    v_lshrrev_b32 v{a}, 16, v{a}
    v_or_b32 v{a}, v{a}, v{c}
    v_lshrrev_b32 v{b}, 16, v{b}""")
    k(f"v_cndmask_b32 v{Q4[q]}, v{a}, v{Q4[q]}, vcc\nv_cndmask_b32 v{Q4[q]+1}, v{b}, v{Q4[q]+1}, vcc")

def phase(p, extra_m=(), fill=None):
    t = p >> 1; q = p & 1
    cur, nxt = KS[t & 1], KS[(t + 1) & 1]
    sb = S[p % 4]; sprev = S[(p - 1) % 4]; snew = S[(p + 2) % 4]
    v1 = nxt['V1'] if q == 0 else cur['V1']
    pv2 = f"v_smfmac_f32_32x32x32_bf16 {vr(O[1-q],16)}, {vr(v1,4)}, {vr(sprev+8,8)}, v{IDX}"
    qk1 = f"v_mfma_f32_32x32x16_bf16 {vr(snew,16)}, {vr(cur['K16'],4)}, {vr(Q16[q],4)}, 0"
    qk2 = f"v_mfma_f32_32x32x8_bf16 {vr(snew,16)}, {vr(cur['K4'],2)}, {vr(Q4[q],2)}, {vr(snew,16)}"
    pv1 = f"v_smfmac_f32_32x32x32_bf16 {vr(O[q],16)}, {vr(cur['V0'],4)}, {vr(sb,8)}, v{IDX}"
    tt = t % 4
    D = []
    if q == 0:
        D = [f"ds_read_b128 {vr(nxt['V1'],4)}, v{aV1} offset:{tt*TS}", f"ds_read2st64_b64 {vr(nxt['K16'],4)}, v{aK16} offset0:{6*tt} offset1:{6*tt+1}",
             f"ds_read_b64 {vr(nxt['K4'],2)}, v{aK4} offset:{tt*TS}", f"ds_read_b128 {vr(nxt['V0'],4)}, v{aV0} offset:{tt*TS}"]
    n = len(extra_m)
    if n == 0: ms, gaps = [[pv2], [qk1], [qk2], [pv1]], [2, 4, 4, 4, 2]
    elif n == 1: ms, gaps = [[pv2], [qk1], extra_m[0], [qk2], [pv1]], [2, 3, 3, 3, 4, 1]
    else: ms, gaps = [[pv2], extra_m[0], [qk1], extra_m[1], [qk2], [pv1]], [2, 2, 3, 3, 2, 3, 1]
    fill = list(fill or [])
    out = []; e = 0
    for i, g in enumerate(gaps):
        out += [f"v_exp_f32 v{sb+j}, v{sb+j}" for j in range(e, e + g)]; e += g
        if i < len(ms):
            out += ms[i]
            if D: out.append(D.pop(0))
            nf = -(-len(fill) // (len(ms) - i))
            if q == 0 and i < len(ms) - 1 and D: nf = min(nf, 1)
            for f in fill[:nf]: out += f if isinstance(f, list) else [f]
            fill = fill[nf:]
    return out

def resolve(items, pro=()):
    vm = [(i, it[1]) for i, it in enumerate(items) if isinstance(it, tuple) and it[0] == 'vm']
    out = []
    for i, it in enumerate(items):
        if not isinstance(it, tuple): out.append(it)
        elif it[0] == 'vm': out.append(it[2])
        else:
            before = [t for j, t in vm if j < i]; after = [t for j, t in vm if j > i]
            seq = after + before
            last = max(idx for idx, t in enumerate(seq) if t in it[1])
            n = len(seq) - 1 - last
            seq = list(pro) + before
            hit = [idx for idx, t in enumerate(seq) if t in it[1]]
            if hit: n = min(n, len(seq) - 1 - max(hit))
            out.append(f"s_waitcnt vmcnt({n}){it[2]}")
    return out

def chunk_head(first_wait):
    return [f"v_add_u32 v{a}, s{DELTA}, v{a}" for a in (aK16, aK4, aV0, aV1)] + [first_wait, "s_barrier"]
def chunk_book():
    return [f"s_add_u32 s{DSRC}, s{DSRC}, {4*2560}\ns_mov_b32 s{DELTA}, {CH}\ns_cmp_eq_u32 s{DSLOT}, s{DELTA}\ns_cselect_b32 s{DELTA}, {(-2*CH) & 0xffffffff}, s{DELTA}",
            f"s_add_u32 s{DSLOT}, s{DSLOT}, {CH}\ns_cmp_eq_u32 s{DSLOT}, {3*CH}\ns_cselect_b32 s{DSLOT}, 0, s{DSLOT}\ns_add_u32 s{CNT}, s{CNT}, 1"]

WOL = [114688 - 8192, 0]
NWL = [14, 8]
def wo_frag(g, f):
    nu = 3 - g
    return f // nu, f % nu

def attn_main(k, end):
    full = OPT.get('upto', 4) >= 4
    stamp(k, 3)
    k(f"v_mov_b32 v12, 0\nv_mov_b32 v13, 0")
    for i in range(8): k(f"v_mov_b32 v{S[3]+8+i}, 0")
    zz = [f"v_mfma_f32_32x32x8_bf16 {vr(b,16)}, v[12:13], v[12:13], 0" for b in O + DA]
    k("s_waitcnt vmcnt(14)")
    qk(k, S[0], KS[1]['K16'], KS[1]['K4'], 0)
    qk(k, S[1], KS[1]['K16'], KS[1]['K4'], 1)
    k("\n".join(zz[:2]))
    for i in range(4): k(f"v_mov_b32 v{KS[1]['V1']+i}, 0")
    k(f"s_mov_b32 s{CNT}, 0\ns_mov_b32 s{DSLOT}, {2*CH}\ns_mov_b32 s{DELTA}, 0\nv_cmp_eq_u32 vcc, 0, v2")
    rowmax(k, S[0], S[2], True)
    k(zz[2])
    rowmax(k, S[1], S[2]+1, True)
    k(zz[3])
    setpad(k, S[2], 0, S[2]+2, S[2]+3, S[2]+4)
    k(zz[4])
    setpad(k, S[2]+1, 1, S[2]+2, S[2]+3, S[2]+4)
    k("s_waitcnt vmcnt(6)\ns_nop 0")
    qk(k, S[0], KT16, KT4, 0)
    qk(k, S[1], KT16, KT4, 1)
    k(f"""s_bfe_u32 s{BLK}, s2, 0x30003
    s_add_u32 s{BLK}, s{BLK}, s{NB}
    s_mul_i32 s23, s{BLK}, 11
    s_lshr_b32 s23, s23, 5
    s_mul_i32 s23, s23, 3
    s_sub_u32 s{BLK}, s{BLK}, s23
    s_mul_i32 s23, s{KQ}, 3
    s_add_u32 s23, s23, s{BLK}
    s_mul_i32 s23, s23, 9
    s_mul_i32 s{SH}, s{TB}, 108
    s_add_u32 s{SH}, s{SH}, s23
    s_lshl_b32 s{SH}, s{SH}, 10
    s_add_u32 s{SH}, s{SH}, {WS_HF}
    s_mul_i32 s22, s{NB}, 5
    s_lshl_b32 s28, s{GRP}, 1
    s_add_u32 s22, s22, s28
    s_mul_i32 s{SWT}, s23, 20
    s_add_u32 s{SWT}, s{SWT}, s22
    s_lshl_b32 s{SWT}, s{SWT}, 10
    s_add_u32 s{SWT}, s{SWT}, {WS_WT}
    s_add_u32 s22, s22, s{GRP}
    s_lshl_b32 s28, s{KQ}, 3
    s_add_u32 s28, s28, 108
    s_mul_i32 s34, s28, 20
    s_add_u32 s34, s34, s22
    s_lshl_b32 s34, s34, 10
    s_add_u32 s34, s34, {WS_WT}
    s_lshl_b32 s28, s{KQ}, 1
    s_add_u32 s28, s28, 140
    s_mul_i32 s35, s28, 20
    s_add_u32 s35, s35, s22
    s_lshl_b32 s35, s35, 10
    s_add_u32 s35, s35, {WS_WT}
    s_lshl_b32 s32, s{TAB+2}, 5
    s_add_u32 s32, s32, s{TAB+1}
    s_lshl_b32 s32, s32, 7
    s_add_u32 s32, s32, {WS_FH}
    s_lshr_b32 s33, s{TB}, 3
    s_lshl_b32 s33, s33, 12
    s_add_u32 s33, s33, {WS_FH}
    s_add_u32 s23, s{TAB}, s{S_WAVE}
    s_cmp_eq_u32 s23, 0
    s_cselect_b32 s42, 1, 63
    v_lshlrev_b32 v12, 7, v0
    v_mov_b32 v13, 1""")
    if full:
        nw = k.lab("nw")
        k(f"s_add_u32 s23, s{TAB}, s{GRP}\ns_cmp_eq_u32 s23, 0\ns_cbranch_scc1 {nw}\ns_waitcnt vmcnt(3)")
        k.label(nw)
    stamp(k, 4)
    if OPT.get('stamp'): k("s_waitcnt lgkmcnt(0)")
    loop = k.lab("al")
    k(".p2align 6")
    k.label(loop)
    items = []
    for p in range(8):
        if p == 0:
            items += chunk_head("s_waitcnt lgkmcnt(0)" if full else "s_waitcnt vmcnt(3) lgkmcnt(0)")
            if full:
                nf = k.lab("nf")
                items += [f"s_cmp_lg_u32 s{CNT}, s42\ns_cbranch_scc1 {nf}\ns_mov_b64 exec, 1\nbuffer_store_dword v13, v12, {ws}, s32 offen sc1\ns_mov_b64 exec, -1\n{nf}:"]
        elif p % 2 == 0: items.append("s_waitcnt lgkmcnt(0)")
        if p % 2 == 0: items.append(f"s_setprio {3 - p//2}")
        fill = []
        if p == 1:
            d = kv_dma(); fill = [f"s_add_u32 m0, s{DLDS}, s{DSLOT}\ns_nop 0\n" + d[0], d[1], d[2]]
        if p == 3:
            fill = chunk_book()
            if not full: fill.append(f"s_cmp_eq_u32 s{CNT}, 6\ns_cselect_b32 s23, {32*2560}, 0\ns_sub_u32 s{DSRC}, s{DSRC}, s23")
        if p == 5 and full:
            n2 = k.lab("n2")
            fill = [f"s_cmp_lg_u32 s{CNT}, 2\ns_cbranch_scc1 {n2}\ns_mov_b64 exec, 0x3ffff\nbuffer_load_dword v14, v12, {ws}, s33 offen sc1\ns_mov_b64 exec, -1\n{n2}:"]
        items += phase(p, fill=fill)
    k("\n".join(items))
    if full: k("s_waitcnt vmcnt(0)")
    k(f"s_cmp_lg_u32 s{CNT}, {2 if full else 8}\ns_cbranch_scc1 {loop}")
    join = k.lab("aj")
    if full:
        stamp(k, 5)
        pl, ok = k.lab("ph"), k.lab("ok")
        k(f"s_mov_b64 exec, 0x3ffff\ns_mov_b32 s21, {SPIN}")
        k.label(pl)
        k(f"v_cmp_ne_u32 vcc, 1, v14\ns_nop 1\ns_cmp_eq_u64 vcc, 0\ns_cbranch_scc1 {ok}\ns_sleep 6\nbuffer_load_dword v14, v12, {ws}, s33 offen sc1\ns_sub_u32 s21, s21, 1\ns_waitcnt vmcnt(0)\ns_cbranch_scc0 {pl}")
        k.label(ok)
        k("s_mov_b64 exec, -1")
        g1 = k.lab("g1")
        k(f"s_mov_b32 s{WI}, 0\ns_cmp_eq_u32 s{GRP}, 1\ns_cbranch_scc1 {g1}")
        for g in range(2):
            if g: k.label(g1)
            has2 = lambda j: (j % 9) % 2 == g
            uoff = [0, 1024, 2048] if g == 0 else [1024, 2048, 0]
            def loads(j):
                d = DS[j % 3]; L = [('vm', f"d{j%9}", f"buffer_load_dwordx4 {vr(d,4)}, v{gL}, {ws}, s{SH} offen {LD}")]
                for u in range(3 if has2(j) else 2):
                    L.append(('vm', f"d{j%9}", f"buffer_load_dwordx4 {vr(d+4+4*u,4)}, v{gL}, {ws}, s{SWT} offen offset:{uoff[u]} {LD}"))
                if j % 9 == 8:
                    L.append(f"s_add_u32 s{BLK}, s{BLK}, 1\ns_cmp_eq_u32 s{BLK}, 3\ns_cselect_b32 s{BLK}, 0, s{BLK}\ns_cselect_b32 s23, -26, 1\ns_lshl_b32 s22, s23, 10\ns_add_u32 s{SH}, s{SH}, s22\ns_mul_i32 s22, s23, 20480\ns_add_u32 s{SWT}, s{SWT}, s22")
                else:
                    L.append(f"s_add_u32 s{SH}, s{SH}, 1024\ns_add_u32 s{SWT}, s{SWT}, 20480")
                return L
            k(f"s_mul_i32 s43, s{KQ}, {NWL[g]*1024}\ns_add_u32 s43, s43, {WOL[g]}")
            pro = []
            for j in range(2):
                for it in loads(j):
                    k(it[2] if isinstance(it, tuple) else it)
                    if isinstance(it, tuple): pro.append(it[1])
            mf = []
            for j in range(9):
                d = DS[j % 3]
                for u in range(3 if has2(j) else 2):
                    it = [f"v_mfma_f32_32x32x16_bf16 {vr(DA[u],16)}, {vr(d+4+4*u,4)}, {vr(d,4)}, {vr(DA[u],16)}"]
                    if u == 0: it = [('wait', [f"d{j}"], "")] + it
                    mf.append((j, u, it))
            nper = [(len(mf) * (p + 1)) // 16 - (len(mf) * p) // 16 for p in range(16)]
            npf = 5 if g == 0 else 3
            def wo_dma(n):
                nu = 3 - g
                return ('vm', 'wo', f"""s_min_u32 s23, s{WI}, {NWL[g]-1}
                s_mul_i32 s22, s23, {171 if nu == 3 else 256}
                s_lshr_b32 s22, s22, 9
                s_mul_i32 s22, s22, {20480 - 1024*nu}
                s_lshl_b32 s23, s23, 10
                s_add_u32 m0, s43, s23
                s_add_u32 s22, s22, s23
                s_add_u32 s22, s22, s34
                s_add_u32 s{WI}, s{WI}, 1
                buffer_load_dwordx4 v{gL}, {ws}, s22 offen {LD} lds""")
            items = []; mi = 0; pref = [wo_dma(n) for n in range(npf)]
            for p in range(16):
                pp = p % 8
                if pp == 0: items += chunk_head(('wait', [f"kv{p//8}"], " lgkmcnt(0)"))
                elif pp % 2 == 0: items.append("s_waitcnt lgkmcnt(0)")
                if pp % 2 == 0: items.append(f"s_setprio {3 - pp//2}")
                ex = mf[mi:mi + nper[p]]; mi += nper[p]
                fill = []
                if pp == 1:
                    tag = f"kv{p//8}"
                    f0 = NWL[g] + 3 * (p // 8)
                    srcs = []
                    for n in range(3):
                        j_, u_ = wo_frag(g, f0 + n)
                        base = ("s34", j_ * 20480) if j_ < 8 else ("s35", (j_ - 8) * 20480)
                        srcs.append(f"s_add_u32 s{28+n}, {base[0]}, {base[1] + 1024*u_ - 1024*n}")
                    fill.append("\n".join(srcs) + f"\ns_cmp_ge_u32 s{CNT}, 6\n" + "\n".join(f"s_cselect_b32 s{28+n}, s{28+n}, s{DSRC}" for n in range(3))
                                + f"\ns_cselect_b64 s[12:13], -1, {sr(M32,2)}\ns_add_u32 m0, s{DLDS}, s{DSLOT}")
                    fill.append([('vm', tag, f"buffer_load_dwordx4 v{gL}, {ws}, s28 offen {LD} lds"), ('vm', tag, f"buffer_load_dwordx4 v{gL}, {ws}, s29 offen offset:1024 {LD} lds")])
                    fill.append([('vm', tag, f"s_mov_b64 exec, s[12:13]\nbuffer_load_dwordx4 v{gL}, {ws}, s30 offen offset:2048 {LD} lds\ns_mov_b64 exec, -1")])
                if pp == 3: fill += chunk_book()
                if pp in (5, 7) or (pp == 6 and g == 0 and p < 8):
                    if pref: fill.append([pref.pop(0)])
                exm = []
                for (j, u, it) in ex:
                    it = list(it)
                    if u == 0: it += loads(j + 2)
                    exm.append(it)
                items += phase(p, exm, fill)
            assert mi == len(mf) and not pref
            lp = k.lab("gl")
            k(".p2align 6")
            k.label(lp)
            k("\n".join(resolve(items, pro)))
            k(f"s_cmp_lg_u32 s{CNT}, 8\ns_cbranch_scc1 {lp}")
            if g == 0: k(f"s_branch {join}")
    k.label(join)
    stamp(k, 6)
    k(f"s_setprio 0\ns_waitcnt vmcnt(0) lgkmcnt(0)")
    k(f"v_smfmac_f32_32x32x32_bf16 {vr(O[1],16)}, {vr(KS[1]['V1'],4)}, {vr(S[3]+8,8)}, v{IDX}")
    MB = RB + (7 % 3) * CH
    k(f"s_mul_i32 s28, s{S_WAVE}, 3072\ns_xor_b32 s29, s{S_WAVE}, 4\ns_mul_i32 s29, s29, 3072\nv_add_u32 v12, s28, v{gL}\nv_add_u32 v13, s29, v{gL}")
    k("s_barrier")
    h1 = k.lab("h1"); hj = k.lab("hj")
    k(f"s_cmp_eq_u32 s{GRP}, 1\ns_nop 4\ns_cbranch_scc1 {h1}")
    for i in range(3): k(f"ds_write_b128 v12, {vr(O[1]+4*i,4)} offset:{MB+1024*i}")
    k(f"s_branch {hj}")
    k.label(h1)
    for i in range(3): k(f"ds_write_b128 v12, {vr(O[0]+4*i,4)} offset:{MB+1024*i}")
    k("s_nop 1")
    for i in range(12): k(f"v_mov_b32 v{O[0]+i}, v{O[1]+i}")
    for i in range(4): k(f"v_mov_b32 v{Q16[0]+i}, v{Q16[1]+i}")
    k(f"v_mov_b32 v{Q4[0]}, v{Q4[1]}\nv_mov_b32 v{Q4[0]+1}, v{Q4[1]+1}")
    k.label(hj)
    k(f"s_add_u32 s{QT}, s{QT}, s{GRP}\ns_mul_i32 s28, s{QT}, 40960\ns_add_u32 s28, s28, {WS_OF}\ns_lshl_b32 s29, s{HEAD}, 8\ns_add_u32 s29, s29, s28\ns_add_u32 s29, s29, 32768\ns_lshl_b32 s23, s{HEAD}, 10\ns_add_u32 s28, s28, s23")
    k("s_mov_b32 s30, 0x5f800000\ns_waitcnt lgkmcnt(0)\ns_barrier")
    OO = O[0]; X = S[0]
    for i in range(3): k(f"ds_read_b128 {vr(X+4*i,4)}, v13 offset:{MB+1024*i}")
    k("s_waitcnt lgkmcnt(0)")
    for i in range(0, 12, 2): k(f"v_pk_add_f32 {vr(OO+i,2)}, {vr(OO+i,2)}, {vr(X+i,2)}")
    norm = k.lab("norm"); slow = k.lab("slow")
    def getl():
        k(f"v_mov_b32 v12, v{OO+8}\nv_mov_b32 v13, v{OO+8}\ns_nop 1\nv_permlane32_swap_b32 v12, v13\ns_nop 1")
    getl()
    if OPT.get('slow'): k(f"s_branch {slow}")
    k(f"v_cmp_nle_f32 vcc, v13, s30\ns_nop 1\ns_cmp_lg_u64 vcc, 0\ns_cbranch_scc1 {slow}")
    k.label(norm)
    k("v_rcp_f32 v12, v13\ns_nop 0")
    if full: k(f"v_mul_f32 v12, v12, v{GQ}")
    for i in range(0, 12, 2): k(f"v_pk_mul_f32 {vr(OO+i,2)}, {vr(OO+i,2)}, v[12:13] op_sel_hi:[1,0]")
    for i in range(6): k(f"v_cvt_pk_bf16_f32 v{X+i}, v{OO+2*i}, v{OO+2*i+1}")
    k(f"buffer_store_dwordx4 {vr(X,4)}, v{gL}, {ws}, s28 offen sc1")
    k(f"s_mov_b64 exec, {sr(M32,2)}\nbuffer_store_dwordx2 {vr(X+4,2)}, v{T0}, {ws}, s29 offen sc1\ns_mov_b64 exec, -1")
    stamp(k, 7)
    if full: out_proj(k)
    if OPT.get('stamp'): stamps_out(k, 11 if full else 9)
    k.label(end)
    k("s_endpgm")
    k.label(slow)
    st = KS[0]
    k(f"v_cmp_eq_u32 vcc, 0, v2\nv_mov_b32 v3, 0\ns_nop 1\nv_cndmask_b32 v{Q4[0]}, v3, v{Q4[0]}, vcc\nv_cndmask_b32 v{Q4[0]+1}, v3, v{Q4[0]+1}, vcc")
    k(f"v_mov_b32 v{st['K4']}, s{ONES}\nv_mov_b32 v{st['K4']+1}, s{K1}")
    for i in range(4): k(f"v_mov_b32 v{st['V0']+i}, s{ONES}\nv_mov_b32 v{st['V1']+i}, s{ONES}")
    k(f"v_mov_b32 v{S[2]}, 0xff800000\ns_mov_b32 s{CNT}, 0")
    def pk(dst, skew):
        k(f"s_sub_u32 s{dst}, s{CNT}, {skew}\ns_and_b32 s{dst}, s{dst}, 31\ns_and_b32 s23, s{CNT}, 32\ns_or_b32 s{dst}, s{dst}, s23\ns_mul_i32 s{dst}, s{dst}, 2560\ns_add_u32 s{dst}, s{dst}, s{KVB}")
    def ldk():
        pk(22, 2)
        k(f"buffer_load_dwordx2 {vr(st['K16'],2)}, v{T0}, {ws}, s22 offen {LD}\nbuffer_load_dwordx2 {vr(st['K16']+2,2)}, v{T0}, {ws}, s22 offen offset:512 {LD}")
        k(f"s_mov_b64 exec, {sr(M32,2)}\nbuffer_load_dwordx2 {vr(st['K4'],2)}, v{T0}, {ws}, s22 offen offset:1024 {LD}\ns_mov_b64 exec, -1")
    l1 = k.lab("p1"); k.label(l1)
    ldk()
    k("s_waitcnt vmcnt(0)")
    qk(k, S[0], st['K16'], st['K4'], 0)
    k("s_nop 11")
    rowmax(k, S[0], S[2], False)
    k(f"s_add_u32 s{CNT}, s{CNT}, 1\ns_cmp_lg_u32 s{CNT}, 64\ns_cbranch_scc1 {l1}")
    setpad(k, S[2], 0, S[2]+2, S[2]+3, S[2]+4)
    for i in range(16): k(f"v_mov_b32 v{OO+i}, 0")
    k(f"s_mov_b32 s{CNT}, 0")
    l2 = k.lab("p2"); k.label(l2)
    ldk()
    pk(31, 1)
    k(f"s_mov_b64 exec, {sr(M20,2)}")
    k(f"buffer_load_dwordx4 {vr(st['V0'],4)}, v{T1}, {ws}, s31 offen offset:1280 {LD}")
    k(f"buffer_load_dwordx4 {vr(st['V1'],4)}, v{T1}, {ws}, s31 offen offset:1920 {LD}")
    k("s_mov_b64 exec, -1\ns_waitcnt vmcnt(0)")
    qk(k, S[0], st['K16'], st['K4'], 0)
    k("s_nop 11")
    for i in range(16): k(f"v_exp_f32 v{S[0]+i}, v{S[0]+i}")
    k("s_nop 1")
    k(f"v_smfmac_f32_32x32x32_bf16 {vr(OO,16)}, {vr(st['V0'],4)}, {vr(S[0],8)}, v{IDX}")
    k(f"v_smfmac_f32_32x32x32_bf16 {vr(OO,16)}, {vr(st['V1'],4)}, {vr(S[0]+8,8)}, v{IDX}")
    k(f"s_add_u32 s{CNT}, s{CNT}, 1\ns_cmp_lg_u32 s{CNT}, 64\ns_cbranch_scc1 {l2}")
    k("s_nop 11")
    getl()
    k(f"s_branch {norm}")

def out_proj(k):
    OFR = 16
    WR = [64 + 4 * i for i in range(12)] + [160 + 4 * i for i in range(18)]
    MB = RB + (7 % 3) * CH
    k(f"v_sub_f32 v12, 1.0, v{GO}\ns_bfe_u32 s23, s2, 0x30003\ns_lshl_b32 s23, s23, 5\ns_lshl_b32 s31, s23, 7\ns_add_u32 s31, s31, {WS_FO}\ns_add_u32 s23, s23, s{HEAD}\ns_lshl_b32 s30, s23, 7\ns_add_u32 s30, s30, {WS_FO}")
    for u in range(3):
        for i in range(0, 16, 2): k(f"v_pk_mul_f32 {vr(DA[u]+i,2)}, {vr(DA[u]+i,2)}, v[12:13] op_sel_hi:[1,0]")
    k(f"v_mov_b32 v13, 1\nv_lshlrev_b32 v14, 7, v1\nv_add_u32 v3, s43, v{gL}\nv_add_u32 v4, s{DLDS}, v{gL}")
    k("s_waitcnt vmcnt(0)\ns_barrier")
    nf = k.lab("nf")
    k(f"s_cmp_lg_u32 s{S_WAVE}, 0\ns_cbranch_scc1 {nf}\ns_mov_b64 exec, 1\nbuffer_store_dword v13, v14, {ws}, s30 offen sc1\ns_mov_b64 exec, -1")
    k.label(nf)
    stamp(k, 8)
    k(f"s_mul_i32 s28, s{TB}, 40960\ns_add_u32 s28, s28, {WS_OF}\ns_lshl_b32 s23, s{KQ}, 11\ns_add_u32 s29, s28, s23\ns_add_u32 s29, s29, 32768\ns_lshl_b32 s23, s{KQ}, 13\ns_add_u32 s28, s28, s23\ns_add_u32 s33, s28, 4096")
    k(f"v_lshlrev_b32 v5, 3, v1\nv_lshl_add_u32 v5, v2, 9, v5\ns_lshl_b32 s23, s{KQ}, 12\nv_add_u32 v6, s23, v{gL}")
    k(f"s_mov_b32 s{SX}, s{P_OUT}\ns_mov_b32 s{SX+1}, s{P_OUT+1}")
    g1, fin = k.lab("o1"), k.lab("of")
    k(f"s_cmp_eq_u32 s{GRP}, 1\ns_cbranch_scc1 {g1}")
    for g in range(2):
        if g: k.label(g1)
        nu = 3 - g; nf_ = 10 * nu; nl = NWL[g]
        dir0 = nl + 6
        for f in range(dir0, nf_):
            j_, u_ = wo_frag(g, f)
            base = ("s34", j_ * 20480) if j_ < 8 else ("s35", (j_ - 8) * 20480)
            if u_ == 0 or f == dir0: k(f"s_add_u32 s22, {base[0]}, {base[1]}")
            k(f"buffer_load_dwordx4 {vr(WR[f],4)}, v{gL}, {ws}, s22 offen offset:{1024*u_} {LD}")
        if g == 1:
            for q in range(4): k(f"ds_write_b128 v6, {vr(DA[2]+4*q,4)} offset:{MB+1024*q}")
        for f in range(dir0):
            if f < nl: k(f"ds_read_b128 {vr(WR[f],4)}, v3 offset:{1024*f}")
            else:
                c = 6 + (f - nl) // 3
                k(f"ds_read_b128 {vr(WR[f],4)}, v4 offset:{((c+2) % 3)*CH + 1024*((f - nl) % 3)}")
            if f % 12 == 11: k("s_waitcnt lgkmcnt(4)")
        pl = k.lab("po")
        if g == 1:
            np_, p1 = k.lab("np"), k.lab("p1")
            k(f"s_cmp_lg_u32 s{S_WAVE}, 4\ns_cbranch_scc1 {np_}\ns_mov_b64 exec, {sr(M32,2)}\ns_mov_b32 s21, {SPIN}\ns_branch {p1}")
            k.label(pl)
            k(f"s_sleep {OPT.get('slo', 1)}")
            k.label(p1)
            k(f"buffer_load_dword v13, v14, {ws}, s31 offen sc1\ns_sub_u32 s21, s21, 1\ns_waitcnt vmcnt(0)\nv_cmp_ne_u32 vcc, 1, v13\ns_cselect_b64 exec, 0, exec\ns_and_b64 vcc, vcc, exec\ns_cbranch_scc1 {pl}")
            k("s_mov_b64 exec, -1")
            k.label(np_)
        k("s_waitcnt vmcnt(0)\ns_barrier")
        stamp(k, 9)
        for j in range(8): k(f"buffer_load_dwordx4 {vr(OFR+4*j,4)}, v{gL}, {ws}, s{28 if j < 4 else 33} offen offset:{1024*(j%4)} {LD}")
        for j in range(2):
            for h in range(2): k(f"buffer_load_dwordx2 {vr(OFR+32+4*j+2*h,2)}, v5, {ws}, s29 offen offset:{1024*j+256*h} {LD}")
        k("s_waitcnt lgkmcnt(0)")
        for j in range(10):
            k(f"s_waitcnt vmcnt({11-j if j < 8 else (2 if j == 8 else 0)})")
            for u in range(nu):
                k(f"v_mfma_f32_32x32x16_bf16 {vr(DA[u],16)}, {vr(WR[j*nu+u],4)}, {vr(OFR+4*j,4)}, {vr(DA[u],16)}")
        k(f"s_lshl_b32 s23, s{KQ}, 10\ns_add_u32 s23, s23, {WOL[g]}\nv_add_u32 v4, s23, v{gL}\ns_lshl_b32 s23, s{KQ}, 10\ns_add_u32 s23, s23, {MB}\nv_add_u32 v6, s23, v{gL}")
        k(f"v_mul_u32_u24 v7, 1280, v1\nv_lshl_add_u32 v7, v2, 3, v7\ns_mul_i32 s28, s{TB}, 40960\ns_mul_i32 s23, s{NB}, 320\ns_add_u32 s28, s28, s23\ns_lshl_b32 s23, s{KQ}, 4\ns_add_u32 s28, s28, s23")
        k(f"s_nop {1 if nu == 3 else 3}")
        for u in range(nu):
            for q in range(4): k(f"ds_write_b128 v3, {vr(DA[u]+4*q,4)} offset:{4096*u+1024*q}")
        k("s_waitcnt lgkmcnt(0)\ns_barrier")
        R = 160
        nr = 0
        for u in range(nu):
            for w_ in range(4): k(f"ds_read_b128 {vr(R+16*u+4*w_,4)}, v4 offset:{w_*nl*1024+4096*u}"); nr += 1
        if g == 0:
            k("s_waitcnt lgkmcnt(8)")
            for w_ in range(4): k(f"ds_read_b128 {vr(R+48+4*w_,4)}, v6 offset:{4096*w_}")
        for u in range(nu):
            a = R + 16 * u
            k(f"s_waitcnt lgkmcnt({(8 if u == 0 else 8 - 4*u if u < 2 else 0) if g == 0 else 4*(1-u)})")
            srcs = [a + 4, a + 8, a + 12] + ([R + 48, R + 52, R + 56, R + 60] if u == 2 else [])
            for s_ in srcs:
                for e in (0, 2): k(f"v_pk_add_f32 {vr(a+e,2)}, {vr(a+e,2)}, {vr(s_+e,2)}")
            k(f"v_cvt_pk_bf16_f32 v{a+4}, v{a}, v{a+1}\nv_cvt_pk_bf16_f32 v{a+5}, v{a+2}, v{a+3}")
            k(f"buffer_store_dwordx2 {vr(a+4,2)}, v7, {sr(SX,4)}, s28 offen offset:{64*(u + 3*g)}")
        if g == 0: k(f"s_branch {fin}")
    k.label(fin)
```

```python
from common import *

def k1_simple():
    k = Kern("k1s_kernel", vgpr=64, sgpr=64)
    end = k.lab("end")
    k(f"s_cmp_ge_u32 s2, {169*64}\ns_cbranch_scc1 {end}")
    X, WA, WB, WS = 8, 12, 16, 20
    load_srds(k, [("x", X), ("ws", WS)])
    k("s_load_dwordx2 s[24:25], s[0:1], %d" % KA["wqkv"])
    k("s_load_dwordx2 s[26:27], s[0:1], %d" % KA["wg"])
    k("s_load_dwordx2 s[28:29], s[0:1], %d" % KA["wu"])
    k("s_load_dwordx2 s[30:31], s[0:1], %d" % KA["gw"])
    k("s_lshr_b32 s4, s2, 6\ns_and_b32 s5, s2, 63")
    k("v_and_b32 v1, 31, v0\nv_lshrrev_b32 v2, 5, v0")
    k("s_waitcnt lgkmcnt(0)")
    k(f"s_lshl_b32 s6, s5, 5\nv_add_u32 v3, s6, v1\nv_mul_u32_u24 v3, 1280, v3\nv_lshl_add_u32 v3, v2, 4, v3")
    lgu, lg, lgo = k.lab("gu"), k.lab("g"), k.lab("go")
    k(f"s_mov_b32 s{WA+3}, 0x20000\ns_mov_b32 s{WB+3}, 0x20000")
    k(f"s_cmp_ge_u32 s4, 168\ns_cbranch_scc1 {lg}\ns_cmp_ge_u32 s4, 60\ns_cbranch_scc1 {lgu}")
    k(f"s_mov_b32 s{WA}, s24\ns_mov_b32 s{WA+1}, s25\ns_mov_b32 s{WA+2}, {SZ['wqkv']}")
    k(f"s_mov_b32 s{WB}, s24\ns_mov_b32 s{WB+1}, s25\ns_mov_b32 s{WB+2}, {SZ['wqkv']}")
    k("s_mov_b32 s7, 3840\ns_lshl_b32 s6, s4, 5\nv_add_u32 v4, s6, v1\nv_lshlrev_b32 v4, 1, v4")
    k(f"s_branch {lgo}")
    k.label(lgu)
    k(f"s_mov_b32 s{WA}, s26\ns_mov_b32 s{WA+1}, s27\ns_mov_b32 s{WA+2}, {SZ['wg']}")
    k(f"s_mov_b32 s{WB}, s28\ns_mov_b32 s{WB+1}, s29\ns_mov_b32 s{WB+2}, {SZ['wu']}")
    k("s_mov_b32 s7, 3456\ns_sub_u32 s6, s4, 60\ns_lshl_b32 s6, s6, 4\nv_and_b32 v4, 15, v1\nv_add_u32 v4, s6, v4\nv_lshlrev_b32 v4, 1, v4")
    k(f"s_branch {lgo}")
    k.label(lg)
    k(f"s_mov_b32 s{WA}, s30\ns_mov_b32 s{WA+1}, s31\ns_mov_b32 s{WA+2}, {SZ['gw']}")
    k(f"s_mov_b32 s{WB}, s30\ns_mov_b32 s{WB+1}, s31\ns_mov_b32 s{WB+2}, {SZ['gw']}")
    k("s_mov_b32 s7, 2\nv_mov_b32 v4, 0")
    k.label(lgo)
    k("s_lshl_b32 s6, s7, 3\nv_mul_lo_u32 v5, v2, s6\nv_add_u32 v4, v4, v5")
    for j in range(8): k(f"s_mul_i32 s{32+j}, s7, {j}")
    k("s_lshl_b32 s40, s7, 4")
    for i in range(32): k(f"v_mov_b32 v{16+i}, 0")
    k("s_mov_b32 s42, 0x0000ffff\ns_mov_b32 s43, 0x0000ffff\ns_mov_b32 s44, 0xffff0000\ns_mov_b32 s45, 0xffff0000")
    k("s_mov_b32 s41, 40")
    loop = k.lab("loop"); k.label(loop)
    k(f"buffer_load_dwordx4 v[8:11], v3, {sr(X,4)}, 0 offen")
    for msk, srd in ((42, WA), (44, WB)):
        k(f"s_mov_b64 exec, {sr(msk,2)}")
        for j in range(8):
            k(f"buffer_load_ushort v{48+j}, v4, {sr(srd,4)}, s{32+j} offen")
    k("s_mov_b64 exec, -1")
    k("s_waitcnt vmcnt(0)")
    for j in range(4): k(f"v_lshl_or_b32 v{12+j}, v{49+2*j}, 16, v{48+2*j}")
    k("s_nop 1")
    k("v_mfma_f32_32x32x16_bf16 v[16:31], v[12:15], v[8:11], v[16:31]")
    k("v_mfma_f32_32x32x16_bf16 v[32:47], v[8:11], v[12:15], v[32:47]")
    k("v_add_u32 v3, 32, v3\nv_add_u32 v4, s40, v4")
    k(f"s_sub_u32 s41, s41, 1\ns_cmp_lg_u32 s41, 0\ns_cbranch_scc1 {loop}")
    k("s_nop 15")
    egu, eg, ev, ek = k.lab("egu"), k.lab("eg"), k.lab("ev"), k.lab("ek")
    k(f"s_cmp_ge_u32 s4, 168\ns_cbranch_scc1 {eg}\ns_cmp_ge_u32 s4, 60\ns_cbranch_scc1 {egu}\ns_cmp_ge_u32 s4, 40\ns_cbranch_scc1 {ev}\ns_cmp_ge_u32 s4, 20\ns_cbranch_scc1 {ek}")
    def qk(isk):
        stride, off4, base = (2560, 2304, WS_KV) if isk else (1280, 1024, WS_QF)
        if isk:
            k("v_and_b32 v5, 0x13, v1\nv_and_b32 v6, 4, v1\nv_lshl_or_b32 v5, v6, 1, v5\nv_and_b32 v6, 8, v1\nv_lshrrev_b32 v6, 1, v6\nv_or_b32 v5, v5, v6")
            k("s_sub_u32 s6, s4, 20\ns_sub_u32 s46, s5, 2\ns_and_b32 s46, s46, 31\ns_and_b32 s48, s5, 32\ns_or_b32 s46, s46, s48")
        else:
            k(f"v_mov_b32 v5, v1\ns_mov_b32 s6, s4\ns_mov_b32 s46, s5\ns_mov_b32 s47, {f32hex(QSCALE)}")
            for i in range(16): k(f"v_mul_f32 v{16+i}, s47, v{16+i}")
        k(f"s_lshl_b32 s6, s6, 3\ns_mul_i32 s46, s46, {stride}\ns_add_u32 s46, s46, {base}")
        for q4 in range(4):
            k(f"v_add_u32 v6, s6, v2\nv_add_u32 v6, {2*q4}, v6")
            k("v_mul_u32_u24 v7, 205, v6\nv_lshrrev_b32 v7, 10, v7")
            k("v_mul_u32_u24 v8, 5, v7\nv_sub_u32 v8, v6, v8")
            k(f"v_mul_u32_u24 v7, {64*stride}, v7")
            k("v_lshrrev_b32 v9, 1, v8\nv_lshlrev_b32 v9, 9, v9\nv_lshl_add_u32 v9, v5, 4, v9\nv_and_b32 v10, 1, v8\nv_lshl_add_u32 v9, v10, 3, v9")
            k(f"v_lshlrev_b32 v10, 3, v5\nv_add_u32 v10, {off4}, v10")
            k("v_cmp_eq_u32 vcc, 4, v8\ns_nop 1\nv_cndmask_b32 v9, v9, v10, vcc\nv_add_u32 v9, v9, v7")
            k(f"v_cvt_pk_bf16_f32 v12, v{16+4*q4}, v{17+4*q4}\nv_cvt_pk_bf16_f32 v13, v{18+4*q4}, v{19+4*q4}")
            k(f"buffer_store_dwordx2 v[12:13], v9, {sr(WS,4)}, s46 offen\ns_waitcnt vmcnt(0)")
        k(f"s_branch {end}")
    qk(False)
    k.label(ek); qk(True)
    k.label(ev)
    k("s_sub_u32 s6, s4, 40\ns_lshl_b32 s6, s6, 5\nv_add_u32 v6, s6, v1")
    k("v_mul_u32_u24 v7, 3277, v6\nv_lshrrev_b32 v7, 16, v7\nv_mul_u32_u24 v8, 20, v7\nv_sub_u32 v8, v6, v8")
    k(f"v_mul_u32_u24 v7, {64*2560}, v7\nv_mul_u32_u24 v9, 20, v2\nv_add_u32 v9, v9, v8\nv_lshl_add_u32 v9, v9, 4, v7")
    for j in range(2):
        k(f"s_sub_u32 s46, s5, 1\ns_and_b32 s46, s46, 31\ns_and_b32 s48, s5, 32\ns_or_b32 s46, s46, s48\ns_mul_i32 s46, s46, 2560\ns_add_u32 s46, s46, {WS_KV + 1024 + 640*j}")
        for i in range(4): k(f"v_cvt_pk_bf16_f32 v{12+i}, v{32+8*j+2*i}, v{33+8*j+2*i}")
        k(f"buffer_store_dwordx4 v[12:15], v9, {sr(WS,4)}, s46 offen\ns_waitcnt vmcnt(0)")
    k(f"s_branch {end}")
    k.label(egu)
    k(f"s_mov_b32 s47, {f32hex(-LOG2E)}")
    for i in range(8):
        k(f"v_mul_f32 v{16+i}, s47, v{16+i}\nv_exp_f32 v{16+i}, v{16+i}\ns_nop 0\nv_add_f32 v{16+i}, 1.0, v{16+i}\nv_rcp_f32 v{16+i}, v{16+i}\ns_nop 0\nv_mul_f32 v{16+i}, v{16+i}, v{24+i}")
    for i in range(4): k(f"v_cvt_pk_bf16_f32 v{12+i}, v{16+2*i}, v{17+2*i}")
    k(f"s_mul_i32 s46, s5, 108\ns_add_u32 s46, s46, s4\ns_sub_u32 s46, s46, 60\ns_lshl_b32 s46, s46, 10\ns_add_u32 s46, s46, {WS_HF}")
    k(f"v_lshlrev_b32 v9, 4, v0\nbuffer_store_dwordx4 v[12:15], v9, {sr(WS,4)}, s46 offen")
    k(f"s_branch {end}")
    k.label(eg)
    k(f"s_mov_b32 s47, {f32hex(-LOG2E)}")
    k("v_mul_f32 v16, s47, v16\nv_exp_f32 v16, v16\ns_nop 0\nv_add_f32 v16, 1.0, v16\nv_rcp_f32 v16, v16")
    k(f"s_lshl_b32 s46, s5, 7\ns_add_u32 s46, s46, {WS_G}\nv_lshlrev_b32 v9, 2, v1")
    k(f"buffer_store_dword v16, v9, {sr(WS,4)}, s46 offen")
    k.label(end)
    k("s_endpgm")
    return k

def k3_simple():
    k = Kern("k3s_kernel", vgpr=64, sgpr=64)
    end = k.lab("end")
    k(f"s_cmp_ge_u32 s2, {20*64}\ns_cbranch_scc1 {end}")
    WD, WO, WS, OUT = 8, 12, 16, 20
    load_srds(k, [("wd", WD), ("wo", WO), ("ws", WS), ("out", OUT)])
    k("s_lshr_b32 s4, s2, 6\ns_and_b32 s5, s2, 63")
    k("v_and_b32 v1, 31, v0\nv_lshrrev_b32 v2, 5, v0\nv_lshlrev_b32 v3, 4, v0")
    k("s_lshl_b32 s6, s4, 5\nv_add_u32 v6, s6, v1\nv_lshlrev_b32 v6, 1, v6")
    for i in range(32): k(f"v_mov_b32 v{16+i}, 0")
    k("s_waitcnt lgkmcnt(0)")
    def run(srd, acc, nsteps, actbase, tbstride, step0, rows, hbrows, row0, steprows, g4=False):
        for j in range(8): k(f"s_mov_b32 s{32+j}, {rows[j]*1280}")
        k(f"v_mul_u32_u24 v4, {hbrows*1280}, v2\nv_add_u32 v4, v4, v6\nv_add_u32 v4, {row0*1280}, v4")
        k(f"s_mul_i32 s42, s5, {tbstride*1024}\ns_add_u32 s42, s42, {actbase + step0*1024}")
        k(f"s_mov_b32 s41, {nsteps}")
        loop = k.lab("loop"); k.label(loop)
        if g4:
            k(f"v_lshlrev_b32 v5, 3, v1\nv_lshl_add_u32 v5, v2, 9, v5")
            k(f"buffer_load_dwordx2 v[8:9], v5, {sr(WS,4)}, s42 offen\nbuffer_load_dwordx2 v[10:11], v5, {sr(WS,4)}, s42 offen offset:256")
        else:
            k(f"buffer_load_dwordx4 v[8:11], v3, {sr(WS,4)}, s42 offen")
        for j in range(8):
            k(f"buffer_load_ushort v{48+j}, v4, {sr(srd,4)}, s{32+j} offen")
        k("s_waitcnt vmcnt(0)")
        for j in range(4): k(f"v_lshl_or_b32 v{12+j}, v{49+2*j}, 16, v{48+2*j}")
        k("s_nop 1")
        k(f"v_mfma_f32_32x32x16_bf16 {vr(acc,16)}, v[12:15], v[8:11], {vr(acc,16)}")
        k(f"v_add_u32 v4, {steprows*1280}, v4\ns_add_u32 s42, s42, 1024")
        k(f"s_sub_u32 s41, s41, 1\ns_cmp_lg_u32 s41, 0\ns_cbranch_scc1 {loop}")
    r8 = [0,1,2,3,8,9,10,11]
    run(WD, 16, 108, WS_HF, 108, 0, r8, 4, 0, 16)
    run(WO, 32, 32, WS_OF, 40, 0, r8, 4, 0, 20)
    run(WO, 32, 8, WS_OF, 40, 32, [0,1,2,3,20,21,22,23], 40, 16, 80, True)
    k(f"s_lshl_b32 s46, s5, 7\ns_add_u32 s46, s46, {WS_G}\nv_lshlrev_b32 v9, 2, v1")
    k(f"buffer_load_dword v10, v9, {sr(WS,4)}, s46 offen")
    k("s_lshl_b32 s6, s5, 5\nv_add_u32 v7, s6, v1\nv_mul_u32_u24 v7, 1280, v7\nv_lshl_add_u32 v7, v2, 3, v7\ns_lshl_b32 s6, s4, 6")
    k("s_nop 15\ns_waitcnt vmcnt(0)")
    for i in range(16):
        k(f"v_sub_f32 v{32+i}, v{32+i}, v{16+i}\nv_fma_f32 v{16+i}, v10, v{32+i}, v{16+i}")
    for q4 in range(4):
        k(f"v_cvt_pk_bf16_f32 v{12}, v{16+4*q4}, v{17+4*q4}\nv_cvt_pk_bf16_f32 v13, v{18+4*q4}, v{19+4*q4}")
        k(f"buffer_store_dwordx2 v[12:13], v7, {sr(OUT,4)}, s6 offen offset:{16*q4}\ns_waitcnt vmcnt(0)")
    k.label(end)
    k("s_endpgm")
    return k
```

```python
import sys
from simple import *
from attn2 import *
import fz_a
from fz_a import *
A = sys.argv
for a in A[2:]:
    kv = a.split('=')
    OPT[kv[0]] = int(kv[1]) if len(kv) > 1 else 1
upto = OPT.get('upto', 4)
if OPT.get('nosc'): fz_a.SC = ''
k = Kern(NAME + "_kernel" if upto == 4 else "k1_kernel", vgpr=256, sgpr=102)
end, tab, co, fin = k.lab("end"), k.lab("tab"), k.lab("co"), k.lab("fin")
prologue(k, tab, end)
k(f"s_cmp_lt_u32 s{S_WAVE}, 4\ns_cbranch_scc1 {co}")
sp, early = k.lab("sp"), k.lab("early")
loader(k, sp)
k.label(early)
if upto >= 3:
    import fz_b
    fz_b.attn_early(k)
k(f"s_branch {fin}")
k.label(sp)
spare_wg(k)
k(f"s_branch {early}")
k.label(co)
consumer(k, sp, fz_b.attn_early if upto >= 3 else None)
k.label(fin)
if upto >= 3: fz_b.attn_main(k, end)
else:
    if OPT.get('stamp'): stamps_out(k, 4)
    k.label(end)
    k("s_endpgm")
emit_table(k, tab)
L = [(k, 256, 512, LDS_ALL)]
if upto == 3: L.append((k3_simple(), 1280, 64, 0))
assemble(L, sys.argv[1])
```

```python
from common import *

OPT = {}
WS_WT = 0x1600000
WS_FH = 0x1900000
WS_FO = 0x1908000
WS_STAMP = 0x1A00000
SZ['ws'] = 0x1A00000
LDS_ALL = 163840
XSLOT, WBASE, WSLOT, UOFF = 32768, 98304, 24640, 12320
K_GU, K_QK, K_V, K_G, K_SP = range(5)
GLDS = 147584

def wg_table():
    tab = [None] * 256
    R = OPT.get('R', 1)
    nq = 0
    rot = lambda cb, rb: ((OPT.get('rc', 1) * cb + OPT.get('rr', 1) * rb) % R) * OPT.get('rs', 10) // R
    for half in range(2):
        for qx in range(4):
            x = half + 2 * qx
            L = [(K_GU, (18 * qx + j) // 4, 4 * half + (18 * qx + j) % 4) for j in range(18)]
            L += [(K_V if 3 * qx + j // 4 >= 8 else K_QK, 3 * qx + j // 4, 4 * half + j % 4) for j in range(12)]
            for j, (kd, cb, rb) in enumerate(L):
                tab[x + 8 * j] = (kd, cb, rb, rot(cb, rb) | (nq << 8))
                if kd != K_GU: nq += 1
            tab[x + 8 * 30] = (K_G, 0, 4 * half + qx, nq << 8); nq += 1
            tab[x + 8 * 31] = (K_SP, x, 0, 0)
    return tab

P_X, P_WQKV, P_WO, P_WG, P_WU, P_WD, P_GW, P_OUT, P_DBG, P_WS = 36, 38, 40, 44, 46, 48, 50, 52, 54, 56
SX, SW, SWS = 8, 12, 16
TAB = 60
S_WAVE, S_KIND, S_PAR, S_STATE, S_SLOT, S_DELTA, S_CNT = 3, 4, 5, 6, 7, 20, 21
DUMMY = 15
SC = "sc1"

def stamp(k, i, mode=1):
    if OPT.get('stamp') == mode or (OPT.get('stamp') and i < 4 and mode == 1): k(f"{'s_memrealtime' if OPT.get('rt') else 's_memtime'} {sr(80+2*i,2)}")

def stamps_out(k, n):
    k("s_mov_b64 exec, -1\ns_waitcnt vmcnt(0) lgkmcnt(0)")
    k(f"{'s_memrealtime' if OPT.get('rt') else 's_memtime'} {sr(80+2*(n-1),2)}\ns_memrealtime s[14:15]\ns_waitcnt lgkmcnt(0)")
    k(f"s_lshl_b32 s22, s2, 3\ns_add_u32 s22, s22, s{S_WAVE}\ns_mul_i32 s22, s22, {4*12}\ns_add_u32 s22, s22, {WS_STAMP}\ns_add_u32 s{SWS+2}, s{SWS+2}, 0x400000")
    k("v_mov_b32 v1, 0\nv_mov_b32 v2, s81\nv_mov_b32 v3, s14")
    k(f"s_mov_b64 exec, 1\nbuffer_store_dword v2, v1, {sr(SWS,4)}, s22 offen\nbuffer_store_dword v3, v1, {sr(SWS,4)}, s22 offen offset:44")
    for i in range(1, n):
        k(f"s_sub_u32 s23, s{80+2*i}, s80\nv_mov_b32 v2, s23\nbuffer_store_dword v2, v1, {sr(SWS,4)}, s22 offen offset:{4*i}")

def prologue(k, tablabel, end):
    k(f"s_cmp_ge_u32 s2, 256\ns_cbranch_scc1 {end}")
    stamp(k, 0)
    if OPT.get('dbl'): k("s_memrealtime s[100:101]")
    if OPT.get('stamp'): k("s_memrealtime s[14:15]\ns_waitcnt lgkmcnt(0)\ns_mov_b32 s81, s14")
    k("s_load_dwordx16 s[36:51], s[0:1], 0\ns_load_dwordx4 s[52:55], s[0:1], 64\ns_load_dwordx2 s[56:57], s[0:1], 80")
    k("s_getpc_b64 s[58:59]")
    here = k.lab("pc")
    k.label(here)
    k(f"s_lshl_b32 s22, s2, 4\ns_add_u32 s22, s22, {tablabel}-{here}\ns_add_u32 s22, s58, s22\ns_addc_u32 s23, s59, 0")
    k(f"s_load_dwordx4 {sr(TAB,4)}, s[22:23], 0")
    if not OPT.get('nocodepf'):
        k(f"v_lshlrev_b32 v1, 7, v0\nv_min_u32 v1, {tablabel}-{here}, v1\nglobal_load_dword v{DUMMY}, v1, s[58:59]")
    k(f"v_lshrrev_b32 v1, 6, v0\nv_and_b32 v0, 63, v0\nv_readfirstlane_b32 s{S_WAVE}, v1")
    for r, n in ((SX, 'x'), (SWS, 'ws')):
        k(f"s_mov_b32 s{r+2}, {SZ[n]}\ns_mov_b32 s{r+3}, 0x20000")
    k(f"s_mov_b32 s{SW+3}, 0x20000")

def emit_table(k, tablabel):
    k(".p2align 6")
    k(f".type {tablabel},@object")
    k.label(tablabel)
    for e in wg_table(): k(".long %d, %d, %d, %d" % e)

def arrive_qkv(k, a=86):
    sk = k.lab("nl")
    k(f"v_mov_b32 v{a}, 0\nv_mov_b32 v{a+1}, 1\ns_mov_b64 exec, 1")
    k(f"global_atomic_add v{a+2}, v{a}, v{a+1}, {sr(P_DBG,2)} sc0 sc1\ns_waitcnt vmcnt(0)\nv_cmp_eq_u32 vcc, 0x6f, v{a+2}\ns_nop 1\ns_cmp_eq_u64 vcc, 0\ns_cbranch_scc1 {sk}")
    k(f"global_store_dword v{a}, v{a+1}, {sr(P_DBG,2)} offset:128 sc1")
    k.label(sk)
    k("s_mov_b64 exec, -1")

PF = 72
def pf_setup(k, w, stage):
    k(f"""s_and_b32 s23, s{w}, 3
    s_mov_b32 s{PF}, s{P_WG}
    s_mov_b32 s{PF+1}, s{P_WG+1}
    s_mov_b32 s{PF+2}, {SZ['wg']}
    s_mov_b32 s{PF+3}, 0x20000
    s_movk_i32 s76, 864
    s_movk_i32 s77, 128
    s_mov_b32 s78, {64*3456}
    s_cmp_eq_u32 s23, 3
    s_cselect_b32 s{PF}, s{P_WU}, s{PF}
    s_cselect_b32 s{PF+1}, s{P_WU+1}, s{PF+1}
    s_cmp_eq_u32 s23, 1
    s_cselect_b32 s{PF}, s{P_WQKV}, s{PF}
    s_cselect_b32 s{PF+1}, s{P_WQKV+1}, s{PF+1}
    s_cselect_b32 s{PF+2}, {SZ['wqkv']}, s{PF+2}
    s_cselect_b32 s76, 960, s76
    s_cselect_b32 s78, {64*3840}, s78
    s_cmp_eq_u32 s23, 0
    s_cselect_b32 s{PF}, s{P_X}, s{PF}
    s_cselect_b32 s{PF+1}, s{P_X+1}, s{PF+1}
    s_cselect_b32 s{PF+2}, {SZ['x']}, s{PF+2}
    s_cselect_b32 s76, 10240, s76
    s_cselect_b32 s77, 1280, s77
    s_cselect_b32 s78, 128, s78
    s_mul_i32 s76, s76, s2""")
    if stage: k(f"s_mul_i32 s23, s78, {stage}\ns_add_u32 s76, s76, s23")
    k("s_lshl_b32 s23, s77, 3\ns_sub_u32 s78, s78, s23")
def pf_stage(k):
    for i in range(8): k(f"s_buffer_load_dword s79, {sr(PF,4)}, s76\ns_add_u32 s76, s76, s77")
    k("s_add_u32 s76, s76, s78")

def tj_addr(k):
    k(f"""v_lshlrev_b32 v8, 4, v0
    v_lshrrev_b32 v2, 4, v0
    v_bfe_u32 v3, v0, 2, 2
    v_xor_b32 v4, v2, v3
    v_lshlrev_b32 v4, 6, v4
    v_and_b32 v5, 3, v0
    v_lshl_add_u32 v4, v5, 4, v4
    v_mul_u32_u24 v2, 1280, v2
    v_add_u32 v9, v2, v4
    v_lshrrev_b32 v1, 5, v0
    v_lshlrev_b32 v1, 10, v1
    v_lshl_add_u32 v1, v3, 8, v1
    v_bfe_u32 v2, v0, 4, 1
    v_lshl_add_u32 v1, v2, 5, v1
    v_lshl_add_u32 v1, v5, 3, v1
    v_add_u32 v1, s25, v1""")
    for u in range(4): k(f"v_xor_b32 v2, {u}, v3\nv_lshl_add_u32 v{4+u}, v2, 6, v1")
def tj_load(k, job, dst, lds):
    SJ = 72
    k(f"""s_min_u32 s{job}, s{job}, 739
    s_mul_i32 s76, s{job}, 52429
    s_lshr_b32 s76, s76, 18
    s_mul_i32 s30, s76, 5
    s_sub_u32 s64, s{job}, s30
    s_lshl_b32 s65, s76, 4
    s_movk_i32 s66, {4*1280}
    s_movk_i32 s67, {8*1280}
    s_mov_b32 s{SJ}, s{P_WD}
    s_mov_b32 s{SJ+1}, s{P_WD+1}
    s_mov_b32 s{SJ+2}, {SZ['wd']}
    s_sub_u32 s30, s76, 108
    s_mul_i32 s23, s30, 20
    s_cmp_ge_u32 s76, 108
    s_cselect_b32 s65, s23, s65
    s_cselect_b32 s{SJ}, s{P_WO}, s{SJ}
    s_cselect_b32 s{SJ+1}, s{P_WO+1}, s{SJ+1}
    s_cselect_b32 s{SJ+2}, {SZ['wo']}, s{SJ+2}
    s_sub_u32 s30, s76, 140
    s_mul_i32 s23, s30, 80
    s_add_u32 s23, s23, 16
    s_cmp_ge_u32 s76, 140
    s_cselect_b32 s65, s23, s65
    s_cselect_b32 s66, {40*1280}, s66
    s_cselect_b32 s67, {20*1280}, s67
    s_mul_i32 s65, s65, 1280
    s_lshl_b32 s23, s64, 8
    s_add_u32 s65, s65, s23
    s_add_u32 m0, s25, {lds}
    s_add_u32 s30, s65, s66
    buffer_load_dwordx4 v9, {sr(SJ,4)}, s65 offen lds
    s_add_u32 m0, s25, {lds+1024}
    s_add_u32 s65, s65, s67
    buffer_load_dwordx4 v9, {sr(SJ,4)}, s30 offen lds
    s_add_u32 m0, s25, {lds+2048}
    s_add_u32 s30, s65, s66
    buffer_load_dwordx4 v9, {sr(SJ,4)}, s65 offen lds
    s_add_u32 m0, s25, {lds+3072}
    s_mul_i32 s23, s76, 20
    buffer_load_dwordx4 v9, {sr(SJ,4)}, s30 offen lds
    s_lshl_b32 s30, s64, 2
    s_add_u32 s23, s23, s30
    s_lshl_b32 s23, s23, 10
    s_add_u32 s{dst}, s23, {WS_WT}""")

def loader(k, spare):
    vX = 4
    lw = 22
    k(f"s_sub_u32 s{lw}, s{S_WAVE}, 4")
    k(f"""v_lshrrev_b32 v1, 3, v0
    s_lshl_b32 s23, s{lw}, 3
    v_add_u32 v1, s23, v1
    v_mul_u32_u24 v1, 1280, v1
    s_and_b32 s23, s{lw}, 1
    s_lshl_b32 s23, s23, 2
    v_lshrrev_b32 v2, 4, v0
    v_add_u32 v6, s23, v2
    v_and_b32 v3, 7, v0
    v_xor_b32 v6, v6, v3
    v_lshl_add_u32 v{vX}, v6, 4, v1""")
    k(f"s_and_b32 s23, s{lw}, 1\ns_mul_i32 s23, s23, {32*3456}\ns_movk_i32 s24, {3456-192}\ns_mul_i32 s25, s{lw}, {16*3840}\ns_movk_i32 s26, {3840-320}")
    for j in range(3):
        k(f"v_add_u32 v1, {64*j}, v0\nv_mul_u32_u24 v2, 1366, v1\nv_lshrrev_b32 v2, 14, v2\nv_lshl_add_u32 v1, v1, 4, s23\nv_mad_u32_u24 v{5+j}, v2, s24, v1")
    for j in range(5):
        k(f"v_add_u32 v1, {64*j}, v0\nv_mul_u32_u24 v2, 1639, v1\nv_lshrrev_b32 v2, 15, v2\nv_lshl_add_u32 v1, v1, 4, s25\nv_mad_u32_u24 v{8+j}, v2, s26, v1")
    k(f"s_lshl_b32 s24, s{lw}, 10\ns_mov_b32 s32, 0\ns_mov_b32 s33, {WBASE}")
    k("s_waitcnt lgkmcnt(0)")
    k(f"s_mov_b32 s{SX}, s{P_X}\ns_mov_b32 s{SX+1}, s{P_X+1}\ns_mov_b32 s{SWS}, s{P_WS}\ns_mov_b32 s{SWS+1}, s{P_WS+1}")
    k(f"s_cmp_eq_u32 s{TAB}, {K_SP}\ns_cbranch_scc1 {spare}")
    XO, WO, RX, RW = 26, 27, 34, 35
    k(f"s_mul_i32 s{XO}, s{TAB+2}, {256*1280}\ns_and_b32 s{RX}, s{TAB+3}, 0xff\ns_lshl_b32 s23, s{RX}, 7\ns_add_u32 s{XO}, s{XO}, s23\ns_mov_b32 s{RW}, s{RX}")
    def wb(n):
        k(f"s_waitcnt vmcnt({n})\ns_barrier")
        if OPT.get('bst'): bst()
    def bst():
        k("s_memtime s[96:97]\ns_waitcnt lgkmcnt(0)\ns_sub_u32 s96, s96, s80\ns_mov_b32 m0, s98\ns_add_u32 s98, s98, 1\nv_writelane_b32 v250, s96, m0")
    if OPT.get('bst'):
        k("s_mov_b32 s98, 0\nv_mov_b32 v250, 0")
        bst()
    def issueX():
        k(f"s_add_u32 s28, s32, s24")
        for j in range(8):
            k(f"s_add_u32 m0, s28, {4096*j}\ns_add_u32 s30, s{XO}, {j*40960}")
            k(f"buffer_load_dwordx4 v{vX}, {sr(SX,4)}, s30 offen lds")
        k(f"s_add_u32 s{RX}, s{RX}, 1\ns_cmp_eq_u32 s{RX}, 10\ns_cselect_b32 s{RX}, 0, s{RX}\ns_cselect_b32 s23, -9, 1\ns_lshl_b32 s23, s23, 7\ns_add_u32 s{XO}, s{XO}, s23")
        k(f"s_add_u32 s32, s32, {XSLOT}\ns_cmp_eq_u32 s32, {3*XSLOT}\ns_cselect_b32 s32, 0, s32")
    def issueW(gu):
        rs = 3456 if gu else 3840
        k(f"s_add_u32 s28, s33, s25")
        for j in range(6 if gu else 5):
            k(f"s_add_u32 m0, s28, {1024*j}")
            if gu and j == 3: k(f"s_add_u32 s30, s{WO}, {16*rs}")
            else: k("s_nop 0")
            k(f"buffer_load_dwordx4 v{(5 + j % 3) if gu else (8 + j)}, {sr(SW,4)}, s{30 if gu and j >= 3 else WO} offen lds")
        k(f"s_add_u32 s{RW}, s{RW}, 1\ns_cmp_eq_u32 s{RW}, 10\ns_cselect_b32 s{RW}, 0, s{RW}\ns_cselect_b32 s23, -9, 1\ns_mul_i32 s23, s23, {64*rs}\ns_add_u32 s{WO}, s{WO}, s23")
        k(f"s_xor_b32 s33, s33, {WBASE ^ (WBASE + WSLOT)}")
    PFN = OPT.get('pfn', 0)
    lq, ldone = k.lab("ldq"), k.lab("lddone")
    k(f"s_cmp_lg_u32 s{TAB}, {K_GU}\ns_cbranch_scc1 {lq}")
    for gu in (True, False):
        rs = 3456 if gu else 3840
        if gu:
            k(f"s_cmp_ge_u32 s{lw}, 2\ns_cselect_b32 s{SW}, s{P_WU}, s{P_WG}\ns_cselect_b32 s{SW+1}, s{P_WU+1}, s{P_WG+1}\ns_cselect_b32 s25, {UOFF}, 0\ns_mov_b32 s{SW+2}, {SZ['wg']}")
            k(f"s_and_b32 s23, s{lw}, 1\ns_mul_i32 s23, s23, 6144\ns_add_u32 s25, s25, s23")
        else:
            k.label(lq)
            k(f"s_mov_b32 s{SW}, s{P_WQKV}\ns_mov_b32 s{SW+1}, s{P_WQKV+1}\ns_mov_b32 s{SW+2}, {SZ['wqkv']}\ns_mul_i32 s25, s{lw}, 5120")
        k(f"s_mul_i32 s{WO}, s{TAB+1}, {192 if gu else 320}\ns_mul_i32 s23, s{RW}, {64*rs}\ns_add_u32 s{WO}, s{WO}, s23")
        nW = 6 if gu else 5
        l = k.lab("ll"); l1 = k.lab("l1"); l2 = k.lab("l2"); l3 = k.lab("l3")
        k(f"s_mov_b32 s{S_CNT}, 0")
        k.label(l)
        issueW(gu)
        k(f"s_cmp_eq_u32 s{S_CNT}, 1\ns_cbranch_scc0 {l1}")
        wb(nW)
        issueX()
        k.label(l1)
        k(f"s_cmp_eq_u32 s{S_CNT}, 9\ns_cbranch_scc1 {l3}")
        issueX()
        if PFN:
            l4, l5 = k.lab("l4"), k.lab("l5")
            k(f"s_cmp_lg_u32 s{S_CNT}, 0\ns_cbranch_scc1 {l4}")
            pf_setup(k, lw, PFN)
            k.label(l4)
            k(f"s_cmp_lg_u32 s{S_CNT}, {10-PFN}\ns_cbranch_scc1 {l5}")
            k(f"""s_cmp_eq_u32 s{lw}, 3
            s_cselect_b32 s{PF}, s{P_WO}, s{P_WD}
            s_cselect_b32 s{PF+1}, s{P_WO+1}, s{P_WD+1}
            s_mov_b32 s{PF+2}, {SZ['wd']}
            s_cselect_b32 s{PF+2}, {SZ['wo']}, s{PF+2}
            s_cselect_b32 s23, 1, 3
            s_cselect_b32 s76, 0, s{lw}
            s_mul_i32 s23, s23, s2
            s_add_u32 s76, s76, s23
            s_mul_i32 s76, s76, {24*128}
            s_movk_i32 s77, 128
            s_mov_b32 s78, 0""")
            k.label(l5)
            pf_stage(k)
        k(f"s_cmp_eq_u32 s{S_CNT}, 0\ns_cbranch_scc1 {l2}")
        wb(8)
        k.label(l2)
        k(f"s_add_u32 s{S_CNT}, s{S_CNT}, 1\ns_branch {l}")
        k.label(l3)
        if PFN: pf_stage(k)
        wb(0)
        if gu: k(f"s_waitcnt lgkmcnt(0)\ns_branch {ldone}")
    k(f"s_waitcnt lgkmcnt(0)\ns_lshl_b32 s25, s{lw}, 13\ns_add_u32 s25, s25, {XSLOT}\ns_mov_b32 s75, 0x20000")
    stamp(k, 2, 2)
    tj_addr(k)
    k(f"s_lshr_b32 s21, s{TAB+3}, 8\ns_lshl_b32 s21, s21, 2\ns_add_u32 s21, s21, s{lw}\ns_lshl_b32 s21, s21, 1\ns_add_u32 s27, s21, 1")
    tj_load(k, 21, 34, 0)
    tj_load(k, 27, 35, 4096)
    for jb in range(2):
        k(f"s_waitcnt vmcnt({4 if jb == 0 else 4})")
        for u in range(4): k(f"ds_read_b64_tr_b16 {vr(16+16*jb+4*u,2)}, v{4+u} offset:{4096*jb}\nds_read_b64_tr_b16 {vr(18+16*jb+4*u,2)}, v{4+u} offset:{4096*jb+2048}")
        k("s_waitcnt lgkmcnt(0)")
        for u in range(4): k(f"buffer_store_dwordx4 {vr(16+16*jb+4*u,4)}, v8, {sr(SWS,4)}, s{34+jb} offen offset:{1024*u} {SC}")
    stamp(k, 4, 2)
    k("s_waitcnt vmcnt(0)")
    stamp(k, 5, 2)
    if OPT.get('upto', 4) >= 3:
        k("s_barrier")
        stamp(k, 6, 2)
        sk = k.lab("na")
        k(f"s_cmp_lg_u32 s{lw}, 0\ns_cbranch_scc1 {sk}")
        arrive_qkv(k)
        stamp(k, 7, 2)
        k.label(sk)
    k.label(ldone)
    if OPT.get('bst'):
        k(f"s_lshl_b32 s23, s2, 7\ns_add_u32 s23, s23, {WS_STAMP + (1 << 20)}\ns_add_u32 s{SWS+2}, s{SWS+2}, 0x400000\nv_lshlrev_b32 v1, 2, v0\ns_mov_b64 exec, 0xffffffff")
        k(f"buffer_store_dword v250, v1, {sr(SWS,4)}, s23 offen\ns_waitcnt vmcnt(0)\ns_mov_b64 exec, -1\ns_sub_u32 s{SWS+2}, s{SWS+2}, 0x400000")

ACC = 64
XA = [4, 5, 6, 7]; WA = 8
XF = [16, 32]; WF = 48
ZR = 12
ET = 48
def zero_acc(base, n):
    return [f"v_mfma_f32_32x32x8_bf16 {vr(base+16*i,16)}, {vr(ZR,2)}, {vr(ZR,2)}, 0" for i in range(n)]

def gemm_loop(k, gu, vt):
    NT, NU = (4, 3) if gu else (2, 5)
    xf = XF if gu else [16, 24]; wf = WF if gu else 32
    rowb, ub = (192, 32) if gu else (320, 64)
    A = lambda i, j: ACC + 16 * (j * NT + i)
    xr = lambda kk: [f"ds_read_b128 {vr(xf[kk%2]+4*i,4)}, v{XA[kk%4]} offset:{4096*i}" for i in range(NT)]
    wr = lambda kk, j: [f"ds_read_b64_tr_b16 {vr(wf+4*j+2*jj,2)}, v{WA} offset:{(16*(kk%4)+4*jj)*rowb + ub*j}" for jj in range(2)]
    k("\n".join(xr(0)))
    for j in range(NU): k("\n".join(wr(0, j)))
    k(f"s_mov_b32 s{S_CNT}, 10\ns_mov_b32 s{S_SLOT}, 0\ns_mov_b32 s69, {WSLOT}")
    loop = k.lab("gl")
    k(".p2align 6")
    k.label(loop)
    jb = 0 if gu else 1
    for kk in range(4):
        k(f"s_waitcnt lgkmcnt({2*(NU-1)})")
        pend = xr(kk + 1)
        for j in range(NU):
            if j > 0 and not (kk == 3 and j > jb):
                k(f"s_waitcnt lgkmcnt({2*(NU-1) + NT if kk < 3 else 2*(NU-1-j)})")
            for i in range(NT):
                a, b = vr(wf + 4*j, 4), vr(xf[kk%2] + 4*i, 4)
                if vt: a, b = b, a
                k(f"v_mfma_f32_32x32x16_bf16 {vr(A(i,j),16)}, {a}, {b}, {vr(A(i,j),16)}")
                if i == NT - 1: pend = pend + wr(kk + 1, j)
                if kk == 3 and j == jb and i == NT - 1:
                    k(f"v_add_u32 v{XA[0]}, s{S_DELTA}, v{XA[0]}\nv_add_u32 v{WA}, s69, v{WA}\ns_sub_u32 s69, 0, s69")
                    nb = k.lab("nb")
                    k(f"s_waitcnt lgkmcnt(0)\ns_cmp_eq_u32 s{S_CNT}, 0\ns_cbranch_scc1 {nb}\ns_barrier")
                    k.label(nb)
                if not (kk == 3 and (j < jb or (j == jb and i < NT - 1))):
                    n = len(pend) if (j == NU - 1 and i == NT - 1) else min(len(pend), 2)
                    k("\n".join(pend[:n])); pend = pend[n:]
                if kk == 2 and j == NU - 1 and i == 0:
                    k(f"s_add_u32 s{S_SLOT}, s{S_SLOT}, 1\ns_cmp_eq_u32 s{S_SLOT}, 3\ns_cselect_b32 s{S_DELTA}, s70, s71\ns_cselect_b32 s{S_SLOT}, 0, s{S_SLOT}\ns_sub_u32 s{S_CNT}, s{S_CNT}, 1")
                if kk == 3 and j == NU - 1 and i == 0:
                    for a in XA[1:]: k(f"v_add_u32 v{a}, s{S_DELTA}, v{a}")
    k(f"s_cmp_lg_u32 s{S_CNT}, 0\ns_cbranch_scc1 {loop}")

def consumer(k, spare, pre_epilogue=None):
    ws = sr(SWS, 4)
    w = S_WAVE
    k("v_and_b32 v1, 31, v0\nv_lshrrev_b32 v2, 5, v0")
    k(f"v_mov_b32 v{ZR}, 0\nv_mov_b32 v{ZR+1}, 0")
    k(f"s_mov_b32 s70, {(-2*XSLOT) & 0xffffffff}\ns_mov_b32 s71, {XSLOT}")
    k("\n".join(zero_acc(ACC, 12)))
    k(f"v_bfe_u32 v3, v1, 1, 3\nv_xor_b32 v3, v3, v2\nv_lshlrev_b32 v56, 7, v1")
    for kk in range(4):
        k(f"v_xor_b32 v57, {2*kk}, v3\nv_lshl_add_u32 v{XA[kk]}, v57, 4, v56")
    k(f"v_bfe_u32 v3, v0, 2, 2\nv_lshl_add_u32 v56, v2, 3, v3\nv_bfe_u32 v57, v0, 4, 1\nv_and_b32 v58, 3, v0\nv_lshlrev_b32 v58, 3, v58")
    k(f"s_and_b32 s23, s{w}, 1\ns_mul_i32 s23, s23, 96\ns_add_u32 s23, s23, {WBASE}\ns_movk_i32 s24, 192\ns_movk_i32 s25, {UOFF}\ns_movk_i32 s26, 320")
    k(f"v_mad_u32_u24 v{WA}, v56, s24, v58\nv_mad_u32_u24 v{WA}, v57, s25, v{WA}\nv_add_u32 v{WA}, s23, v{WA}")
    k("v_lshlrev_b32 v59, 7, v0")
    k(f"v_mad_u32_u24 v9, v56, s26, v58\nv_lshl_add_u32 v9, v57, 5, v9\nv_add_u32 v9, {WBASE}, v9")
    k("s_waitcnt lgkmcnt(0)")
    k(f"s_mov_b32 s{SWS}, s{P_WS}\ns_mov_b32 s{SWS+1}, s{P_WS+1}")
    if OPT.get('xpf', 1):
        k(f"s_mov_b32 s{SX}, s{P_X}\ns_mov_b32 s{SX+1}, s{P_X+1}\ns_lshl_b32 s23, s2, 2\ns_add_u32 s23, s23, s{w}\ns_mul_i32 s23, s23, 2560\ns_mov_b64 exec, 0xfffff")
        k(f"buffer_load_dword v{DUMMY}, v59, {sr(SX,4)}, s23 offen\ns_mov_b64 exec, -1")
    if OPT.get('wpf', 0):
        n = OPT['wpf']
        k(f"""s_mov_b32 s{SW}, s{P_WG}
        s_mov_b32 s{SW+1}, s{P_WG+1}
        s_movk_i32 s24, {864*n}
        s_cmp_eq_u32 s{w}, 1
        s_cselect_b32 s{SW}, s{P_WQKV}, s{SW}
        s_cselect_b32 s{SW+1}, s{P_WQKV+1}, s{SW+1}
        s_cselect_b32 s24, {960*n}, s24
        s_cmp_eq_u32 s{w}, 3
        s_cselect_b32 s{SW}, s{P_WU}, s{SW}
        s_cselect_b32 s{SW+1}, s{P_WU+1}, s{SW+1}
        s_mul_i32 s23, s24, s2
        s_add_u32 s{SW+2}, s23, s24
        s_cmp_eq_u32 s{w}, 0
        s_cselect_b32 s{SW+2}, 0, s{SW+2}
        buffer_load_dword v{DUMMY}, v59, {sr(SW,4)}, s23 offen""")
    if OPT.get('pfn', 0):
        pf_setup(k, w, 0)
        l = k.lab("pf")
        k(f"s_mov_b32 s{S_CNT}, {OPT.get('pfn', 0)}")
        k.label(l)
        pf_stage(k)
        k(f"s_sub_u32 s{S_CNT}, s{S_CNT}, 1\ns_cmp_lg_u32 s{S_CNT}, 0\ns_cbranch_scc1 {l}")
    done, lq, lv, qd, lg = k.lab("cdone"), k.lab("cq"), k.lab("cv"), k.lab("qd"), k.lab("cg")
    k(f"s_cmp_eq_u32 s{TAB}, {K_SP}\ns_cbranch_scc1 {spare}\ns_cmp_lg_u32 s{TAB}, {K_GU}\ns_cbranch_scc1 {lq}")
    k(f"s_lshr_b32 s23, s{w}, 1\ns_lshl_b32 s23, s23, 14")
    for a in XA: k(f"v_add_u32 v{a}, s23, v{a}")
    k("s_barrier")
    stamp(k, 1)
    k("s_waitcnt lgkmcnt(0)")
    gemm_loop(k, True, False)
    stamp(k, 2)
    k(f"s_lshl_b32 s31, s{TAB+2}, 1\ns_lshr_b32 s26, s{w}, 1\ns_add_u32 s31, s31, s26\ns_mul_i32 s34, s31, {4*108}\ns_lshl_b32 s29, s{TAB+1}, 1\ns_and_b32 s27, s{w}, 1\ns_add_u32 s29, s29, s27\ns_mul_i32 s29, s29, 3")
    k(f"s_add_u32 s34, s34, s29\ns_lshl_b32 s34, s34, 10\ns_add_u32 s34, s34, {WS_HF}\ns_mov_b32 s32, {f32hex(-LOG2E)}\nv_lshlrev_b32 v14, 4, v0")
    k("s_waitcnt lgkmcnt(0)")
    n = 0
    for i in range(4):
        if i == OPT.get('early', 2) and pre_epilogue: pre_epilogue(k)
        for j in range(3):
            a = ACC + 16 * (j * 4 + i); t = a + 8
            for e in range(0, 8, 2): k(f"v_pk_mul_f32 {vr(a+e,2)}, {vr(a+e,2)}, s[32:33] op_sel_hi:[1,0]")
            for e in range(8): k(f"v_exp_f32 v{a+e}, v{a+e}")
            for e in range(0, 8, 2): k(f"v_pk_add_f32 {vr(a+e,2)}, {vr(a+e,2)}, 1.0 op_sel_hi:[1,0]")
            for e in range(8): k(f"v_rcp_f32 v{a+e}, v{a+e}")
            for e in range(0, 8, 2): k(f"v_pk_mul_f32 {vr(a+e,2)}, {vr(a+e,2)}, {vr(a+8+e,2)}")
            for e in range(4): k(f"v_cvt_pk_bf16_f32 v{t+e}, v{a+2*e}, v{a+2*e+1}")
            k(f"buffer_store_dwordx4 {vr(t,4)}, v14, {ws}, s34 offen offset:{1024*j} {SC}")
        if i < 3: k(f"s_add_u32 s34, s34, {108*1024}")
    k(f"s_branch {done}")
    k.label(lq)
    k(f"s_lshl_b32 s23, s{w}, 13\nv_mov_b32 v{WA}, v9")
    for a in XA: k(f"v_add_u32 v{a}, s23, v{a}")
    k(f"s_lshl_b32 s65, s{TAB+2}, 3\ns_lshl_b32 s23, s{w}, 1\ns_add_u32 s65, s65, s23\ns_and_b32 s29, s{TAB+1}, 3")
    k(f"s_cmp_eq_u32 s{TAB}, {K_G}\ns_cbranch_scc1 {lg}\ns_cmp_eq_u32 s{TAB}, {K_V}\ns_cbranch_scc1 {lv}")
    for vt in (False, True):
        if vt:
            k.label(lv)
            k(f"s_movk_i32 s43, 2560\ns_mov_b32 s66, {WS_KV + 1280}\ns_mov_b32 s67, 1\ns_mov_b32 s64, {64*2560}\ns_mov_b32 s42, {64*2560-640}")
            k("v_and_b32 v3, 3, v1\nv_lshlrev_b32 v3, 4, v3\nv_lshl_add_u32 v3, v2, 6, v3\nv_lshrrev_b32 v58, 2, v1")
            for u in range(5):
                k(f"v_add_u32 v56, {8*u}, v58\nv_mul_u32_u24 v57, 205, v56\nv_lshrrev_b32 v57, 10, v57\nv_lshl_add_u32 v56, v56, 7, v3\nv_mad_u32_u24 v{224+u}, v57, s42, v56")
        else:
            k(f"""s_mov_b32 s64, {64*1280}
            s_mov_b32 s42, {f32hex(QSCALE)}
            s_movk_i32 s43, 1280
            s_mov_b32 s66, {WS_QF}
            s_cmp_ge_u32 s{TAB+1}, 4
            s_cselect_b32 s64, {64*2560}, s64
            s_cselect_b32 s42, 1.0, s42
            s_cselect_b32 s43, 2560, s43
            s_cselect_b32 s66, {WS_KV}, s66
            s_cselect_b32 s67, 2, 0
            s_cselect_b64 vcc, -1, 0
            v_and_b32 v3, 0x13, v1
            v_and_b32 v56, 4, v1
            v_lshl_or_b32 v3, v56, 1, v3
            v_bfe_u32 v56, v1, 3, 1
            v_lshl_or_b32 v3, v56, 2, v3
            v_cndmask_b32 v3, v1, v3, vcc
            v_lshlrev_b32 v3, 3, v3
            v_lshl_add_u32 v224, v2, 8, v3
            s_sub_u32 s23, s64, 1024
            v_mad_u32_u24 v225, v2, s23, v3""")
        k(f"s_lshl_b32 s29, s29, 3\ns_mul_i32 s29, s29, s64\ns_add_u32 s66, s66, s29")
        for i in range(2):
            k(f"s_add_u32 s28, s65, {i}\ns_sub_u32 s29, s28, s67\ns_and_b32 s29, s29, 31\ns_and_b32 s28, s28, 32\ns_or_b32 s28, s28, s29\ns_mul_i32 s28, s28, s43\ns_add_u32 s{76+i}, s28, s66")
        k("s_barrier")
        stamp(k, 1)
        k("s_waitcnt lgkmcnt(0)")
        gemm_loop(k, False, vt)
        stamp(k, 2)
        k("s_waitcnt lgkmcnt(0)\ns_nop 7")
        n = 0
        for i in range(2):
            hcur = 0
            for u in range(5):
                a = ACC + 16 * (u * 2 + i)
                if vt:
                    for h in range(2):
                        t = ET + 4 * (n % 4); n += 1
                        for e in range(4): k(f"v_cvt_pk_bf16_f32 v{t+e}, v{a+8*h+2*e}, v{a+8*h+2*e+1}")
                        k(f"buffer_store_dwordx4 {vr(t,4)}, v{224+u}, {ws}, s{76+i} offen offset:{640*h} {SC}")
                else:
                    for q4 in range(4):
                        t = ET + 2 * (n % 8); n += 1
                        gi = 8 * u + 2 * q4; hd, G = gi // 5, gi % 5
                        while hcur < hd: k(f"s_add_u32 s{76+i}, s{76+i}, s64"); hcur += 1
                        for e in (0, 2): k(f"v_pk_mul_f32 {vr(a+4*q4+e,2)}, {vr(a+4*q4+e,2)}, s[42:43] op_sel_hi:[1,0]")
                        k(f"v_cvt_pk_bf16_f32 v{t}, v{a+4*q4}, v{a+4*q4+1}\nv_cvt_pk_bf16_f32 v{t+1}, v{a+4*q4+2}, v{a+4*q4+3}")
                        k(f"buffer_store_dwordx2 {vr(t,2)}, v{225 if G == 4 else 224}, {ws}, s{76+i} offen offset:{256*G} {SC}")
        k(f"s_branch {qd}")
    k.label(lg)
    k(f"s_mov_b32 s{SW}, s{P_GW}\ns_mov_b32 s{SW+1}, s{P_GW+1}\ns_mov_b32 s{SW+2}, {SZ['gw']}\ns_mov_b32 m0, {GLDS}\nv_lshlrev_b32 v3, 4, v0\nv_lshlrev_b32 v{WA}, 4, v2\nv_add_u32 v{WA}, {GLDS}, v{WA}")
    k(f"buffer_load_dwordx4 v3, {sr(SW,4)}, 0 offen lds\nbuffer_load_dwordx4 v3, {sr(SW,4)}, 0 offen offset:1024 lds")
    k(f"s_mov_b32 s{S_CNT}, 10\ns_mov_b32 s{S_SLOT}, 0\ns_waitcnt vmcnt(0) lgkmcnt(0)\ns_barrier")
    l = k.lab("gg"); k.label(l)
    for kk in range(4):
        k(f"ds_read_b128 {vr(16+12*kk,4)}, v{XA[kk]}\nds_read_b128 {vr(20+12*kk,4)}, v{XA[kk]} offset:4096\nds_read_b128 {vr(24+12*kk,4)}, v{WA} offset:{32*kk}")
    k(f"s_add_u32 s{S_SLOT}, s{S_SLOT}, 1\ns_cmp_eq_u32 s{S_SLOT}, 3\ns_cselect_b32 s{S_DELTA}, s70, s71\ns_cselect_b32 s{S_SLOT}, 0, s{S_SLOT}\ns_sub_u32 s{S_CNT}, s{S_CNT}, 1")
    nb = k.lab("nb")
    k(f"s_waitcnt lgkmcnt(0)\ns_cmp_eq_u32 s{S_CNT}, 0\ns_cbranch_scc1 {nb}\ns_barrier")
    k.label(nb)
    for kk in range(4):
        for i in range(2): k(f"v_mfma_f32_32x32x16_bf16 {vr(ACC+16*i,16)}, {vr(24+12*kk,4)}, {vr(16+12*kk+4*i,4)}, {vr(ACC+16*i,16)}")
        k(f"v_add_u32 v{XA[kk]}, s{S_DELTA}, v{XA[kk]}")
    k(f"v_add_u32 v{WA}, 128, v{WA}\ns_cmp_lg_u32 s{S_CNT}, 0\ns_cbranch_scc1 {l}")
    k(f"s_mov_b32 s32, {f32hex(-LOG2E)}\ns_lshl_b32 s28, s65, 7\ns_add_u32 s28, s28, {WS_G}\nv_lshlrev_b32 v3, 2, v1\ns_nop 7")
    for i in range(2):
        a = ACC + 16 * i
        k(f"v_mul_f32 v{a}, s32, v{a}\nv_exp_f32 v{a}, v{a}\ns_nop 0\nv_add_f32 v{a}, 1.0, v{a}\nv_rcp_f32 v{a}, v{a}\ns_nop 0\nbuffer_store_dword v{a}, v3, {ws}, s28 offen offset:{128*i} {SC}")
    k.label(qd)
    stamp(k, 4, 2)
    if OPT.get('upto', 4) >= 3:
        k("s_waitcnt vmcnt(0)")
        stamp(k, 5, 2)
        k("s_barrier")
        stamp(k, 6, 2)
        if pre_epilogue: pre_epilogue(k)
    k.label(done)

def spare_wg(k):
    ws = sr(SWS, 4)
    k(f"s_lshl_b32 s22, s{TAB+1}, 3\ns_add_u32 s22, s22, s{S_WAVE}\nv_mov_b32 v12, 0")
    k(f"s_lshl_b32 s24, s22, 9\ns_add_u32 s23, s24, {WS_FH}\ns_add_u32 s24, s24, {WS_FO}\nv_lshlrev_b32 v2, 7, v0\ns_mov_b64 exec, 15")
    k(f"buffer_store_dword v12, v2, {ws}, s23 offen {SC}\nbuffer_store_dword v12, v2, {ws}, s24 offen {SC}\ns_mov_b64 exec, -1")
    k("s_waitcnt vmcnt(0) lgkmcnt(0)")
    if OPT.get('upto', 4) >= 3:
        k("s_barrier")
        sk = k.lab("na")
        k(f"s_cmp_lg_u32 s{S_WAVE}, 0\ns_cbranch_scc1 {sk}")
        arrive_qkv(k)
        k.label(sk)
```

```python
from fz_a import *
import fz_a

TS = 3072; CH = 8 * TS; RB = 32768
aK16, aK4, aV0, aV1, gL, T0, T1, IDX = 4, 5, 6, 7, 8, 9, 10, 11
Q16 = [16, 20]; Q4 = [24, 26]
KS = [dict(K16=28, K4=32, V0=36, V1=40), dict(K16=44, K4=34, V0=48, V1=52)]
KT16, KT4, GQ, GO = 56, 60, 62, 63
DS = [64, 80, 96]; DA = [112, 128, 144]; S = [160, 176, 192, 208]; O = [224, 240]
HEAD, QT, KQ, GRP = 4, 5, 6, 7
M32, M20, ONES, K1 = 64, 66, 68, 69
KVB, HALF, QB, DSRC, DLDS, DSLOT, DELTA, CNT, SH, SWT = 70, 71, 72, 73, 74, 75, 76, 77, 78, 79
TB, NB, BLK, WI = 26, 27, 24, 25
LD = "sc1"
SPIN = 400000
ws = sr(SWS, 4)

def kv_dma(src=None):
    src = src or f"s{DSRC}"
    return [f"buffer_load_dwordx4 v{gL}, {ws}, {src} offen {LD} lds",
            f"buffer_load_dwordx4 v{gL}, {ws}, {src} offen offset:1024 {LD} lds",
            f"s_mov_b64 exec, {sr(M32,2)}\nbuffer_load_dwordx4 v{gL}, {ws}, {src} offen offset:2048 {LD} lds\ns_mov_b64 exec, -1"]

def attn_early(k):
    k(f"""s_and_b32 s{HEAD}, s2, 7
    s_lshl_b32 s{HEAD}, s{HEAD}, 2
    s_lshr_b32 s23, s2, 6
    s_add_u32 s{HEAD}, s{HEAD}, s23
    s_bfe_u32 s{TB}, s2, 0x30003
    s_lshl_b32 s{TB}, s{TB}, 3
    s_and_b32 s{KQ}, s{S_WAVE}, 3
    s_lshr_b32 s{GRP}, s{S_WAVE}, 2
    s_lshl_b32 s{QT}, s{KQ}, 1
    s_add_u32 s{QT}, s{QT}, s{TB}
    s_and_b32 s{NB}, s{HEAD}, 3
    s_lshr_b32 s23, s{HEAD}, 2
    s_add_u32 s{TB}, s{TB}, s23
    s_mul_i32 s{KVB}, s{HEAD}, {64*2560}
    s_add_u32 s{KVB}, s{KVB}, {WS_KV}
    s_mul_i32 s{HALF}, s{GRP}, {32*2560}
    s_add_u32 s{HALF}, s{HALF}, s{KVB}
    s_lshl_b32 s{QB}, s{HEAD}, 6
    s_add_u32 s{QB}, s{QB}, s{QT}
    s_mul_i32 s{QB}, s{QB}, 1280
    s_add_u32 s{QB}, s{QB}, {WS_QF}
    s_mul_i32 s{DSRC}, s{KQ}, 2560
    s_add_u32 s{DSRC}, s{DSRC}, s{HALF}
    s_mul_i32 s{DLDS}, s{S_WAVE}, {TS}
    s_add_u32 s{DLDS}, s{DLDS}, {RB}
    s_mov_b32 s{M32}, -1
    s_mov_b32 s{M32+1}, 0
    s_mov_b32 s{M20}, 0x000fffff
    s_mov_b32 s{M20+1}, 0x000fffff
    s_mov_b32 s{ONES}, 0x3f803f80
    s_mov_b32 s{K1}, 0x00003f80
    v_and_b32 v1, 31, v0
    v_lshrrev_b32 v2, 5, v0
    v_lshlrev_b32 v{gL}, 4, v0
    v_lshlrev_b32 v{T0}, 3, v0
    v_and_b32 v3, 3, v1
    v_lshlrev_b32 v3, 4, v3
    v_lshl_add_u32 v3, v2, 6, v3
    v_lshrrev_b32 v{T1}, 2, v1
    v_lshl_add_u32 v{T1}, v{T1}, 7, v3
    v_lshlrev_b32 v4, 5, v0
    v_lshlrev_b32 v5, 2, v1""")
    for q in range(2): k(f"v_mov_b32 v{Q4[q]}, 0\nv_mov_b32 v{Q4[q]+1}, 0")
    for r in (KS[0]['K4'], KS[1]['K4'], KT4): k(f"v_mov_b32 v{r}, s{ONES}\nv_mov_b32 v{r+1}, s{K1}")
    for i in range(4): k(f"v_mov_b32 v{KS[0]['V0']+i}, s{ONES}\nv_mov_b32 v{KS[0]['V1']+i}, s{ONES}")
    if OPT.get('zrow', 1):
        k(f"s_mov_b32 s22, 0xffe00000\ns_mov_b32 s23, 0xffe00000\ns_mov_b64 exec, s[22:23]")
        for i in range(4): k(f"v_mov_b32 v{KS[0]['V0']+i}, 0\nv_mov_b32 v{KS[0]['V1']+i}, 0")
        k("s_mov_b64 exec, -1")
    k(f"s_add_u32 s28, s{KVB}, {30*2560}\ns_add_u32 s29, s{HALF}, {30*2560}\ns_add_u32 s30, s{HALF}, {31*2560}")
    k(f"s_add_u32 s31, s{QT}, s{GRP}\ns_lshl_b32 s31, s31, 7\ns_add_u32 s31, s31, {WS_G}\ns_lshl_b32 s22, s{TB}, 7\ns_add_u32 s22, s22, {WS_G}")
    pl = k.lab("pq")
    np_, p1 = k.lab("np"), k.lab("p1")
    k(f"s_cmp_lg_u32 s{S_WAVE}, 4\ns_cbranch_scc1 {np_}\ns_mov_b64 exec, 1\ns_mov_b32 s21, {SPIN}\ns_branch {p1}")
    k.label(pl)
    k(f"s_sleep {OPT.get('slp', 6)}")
    k.label(p1)
    k(f"global_load_dword v3, v4, {sr(P_DBG,2)} offset:128 sc1\ns_sub_u32 s21, s21, 1\ns_waitcnt vmcnt(0)\nv_cmp_ne_u32 vcc, 1, v3\ns_cselect_b64 exec, 0, exec\ns_and_b64 vcc, vcc, exec\ns_cbranch_scc1 {pl}")
    k("s_mov_b64 exec, -1")
    k.label(np_)
    stamp(k, 8, 2)
    k("s_barrier")
    stamp(k, 9, 2)
    x2 = lambda r, so, off: k(f"buffer_load_dwordx2 {vr(r,2)}, v{T0}, {ws}, {so} offen offset:{off} {LD}")
    for q in range(2): x2(Q16[q], f"s{QB}", 1280*q); x2(Q16[q]+2, f"s{QB}", 1280*q + 512)
    x2(KS[1]['K16'], "s28", 0); x2(KS[1]['K16']+2, "s28", 512)
    k(f"s_mov_b64 exec, {sr(M32,2)}")
    x2(Q4[0], f"s{QB}", 1024); x2(Q4[1], f"s{QB}", 2304); x2(KS[1]['K4'], "s28", 1024)
    x2(KT4, "s29", 1024); x2(KS[0]['K4'], "s30", 1024)
    k(f"s_mov_b64 exec, {sr(M20,2)}")
    k(f"buffer_load_dwordx4 {vr(KS[0]['V0'],4)}, v{T1}, {ws}, s30 offen offset:1280 {LD}")
    k(f"buffer_load_dwordx4 {vr(KS[0]['V1'],4)}, v{T1}, {ws}, s30 offen offset:1920 {LD}")
    k("s_mov_b64 exec, -1")
    x2(KT16, "s29", 0); x2(KT16+2, "s29", 512); x2(KS[0]['K16'], "s30", 0); x2(KS[0]['K16']+2, "s30", 512)
    k(f"buffer_load_dword v{GQ}, v5, {ws}, s31 offen {LD}\nbuffer_load_dword v{GO}, v5, {ws}, s22 offen {LD}")
    k(f"s_mov_b32 m0, s{DLDS}\ns_nop 0\n" + "\n".join(kv_dma()))
    k(f"s_add_u32 s{DSRC}, s{DSRC}, {4*2560}\ns_add_u32 m0, s{DLDS}, {CH}\ns_nop 0\n" + "\n".join(kv_dma()))
    k(f"s_add_u32 s{DSRC}, s{DSRC}, {4*2560}")
    k(f"v_mul_u32_u24 v3, {TS}, v0\nv_mov_b32 v4, s{ONES}\nv_mov_b32 v5, s{ONES}\nv_mov_b32 v6, s{ONES}\nv_mov_b32 v7, s{ONES}\ns_mov_b64 exec, 0xffffff")
    k(f"ds_write_b128 v3, v[4:7] offset:{RB+2560}\nv_mov_b32 v7, s{K1}\nds_write_b64 v3, v[6:7] offset:{RB+2576}")
    k(f"v_mov_b32 v4, 0\nv_mov_b32 v5, 0\nv_mov_b32 v6, 0\nv_mov_b32 v7, 0\nds_write_b128 v3, v[4:7] offset:{RB+2592}\ns_mov_b64 exec, -1")
    k(f"s_mul_i32 s23, s{GRP}, {4*TS}\ns_add_u32 s23, s23, {RB}\ns_add_u32 s22, s23, 2576")
    k(f"v_add_u32 v{aK16}, s23, v{T0}\nv_mov_b32 v3, s22\nv_add_u32 v{aK4}, 1024, v{aK16}\nv_cmp_eq_u32 vcc, 0, v2\ns_add_u32 s22, s23, 2560\ns_add_u32 s23, s23, 1280")
    k(f"v_cndmask_b32 v{aK4}, v3, v{aK4}, vcc\nv_add_u32 v{aV0}, s23, v{T1}\nv_cmp_lt_u32 vcc, 20, v1\nv_mov_b32 v3, s22\nv_add_u32 v{aV1}, {32 if OPT.get('zrow', 1) else 0}, v3\nv_cndmask_b32 v3, v3, v{aV1}, vcc\nv_cmp_gt_u32 vcc, 20, v1\nv_add_u32 v{aV1}, 640, v{aV0}")
    k(f"v_mov_b32 v{IDX}, 0xdddddddd\nv_cndmask_b32 v{aV0}, v3, v{aV0}, vcc\nv_cndmask_b32 v{aV1}, v3, v{aV1}, vcc")

def qk(k, sb, k16, k4, q):
    k(f"v_mfma_f32_32x32x16_bf16 {vr(sb,16)}, {vr(k16,4)}, {vr(Q16[q],4)}, 0")
    k(f"v_mfma_f32_32x32x8_bf16 {vr(sb,16)}, {vr(k4,2)}, {vr(Q4[q],2)}, {vr(sb,16)}")
def rowmax(k, sb, dst, first):
    if first:
        k(f"v_max3_f32 v{dst}, v{sb}, v{sb+1}, v{sb+2}")
        rest = list(range(3, 16)) + [0]
    else:
        rest = list(range(16))
    for i in range(0, len(rest), 2):
        k(f"v_max3_f32 v{dst}, v{dst}, v{sb+rest[i]}, v{sb+rest[i+1]}")
def setpad(k, m, q, a, b, c):
    k(f"v_mov_b32 v{a}, v{m}\ns_nop 1\nv_permlane32_swap_b32 v{m}, v{a}\ns_nop 1\nv_max_f32 v{m}, v{m}, v{a}")
    k(f"""v_xor_b32 v{m}, 0x80000000, v{m}
    v_and_b32 v{a}, 0xffff0000, v{m}
    v_sub_f32 v{b}, v{m}, v{a}
    v_and_b32 v{c}, 0xffff0000, v{b}
    v_sub_f32 v{b}, v{b}, v{c}
    v_lshrrev_b32 v{a}, 16, v{a}
    v_or_b32 v{a}, v{a}, v{c}
    v_lshrrev_b32 v{b}, 16, v{b}""")
    k(f"v_cndmask_b32 v{Q4[q]}, v{a}, v{Q4[q]}, vcc\nv_cndmask_b32 v{Q4[q]+1}, v{b}, v{Q4[q]+1}, vcc")

def phase(p, extra_m=(), fill=None):
    t = p >> 1; q = p & 1
    cur, nxt = KS[t & 1], KS[(t + 1) & 1]
    sb = S[p % 4]; sprev = S[(p - 1) % 4]; snew = S[(p + 2) % 4]
    v1 = nxt['V1'] if q == 0 else cur['V1']
    pv2 = f"v_smfmac_f32_32x32x32_bf16 {vr(O[1-q],16)}, {vr(v1,4)}, {vr(sprev+8,8)}, v{IDX}"
    qk1 = f"v_mfma_f32_32x32x16_bf16 {vr(snew,16)}, {vr(cur['K16'],4)}, {vr(Q16[q],4)}, 0"
    qk2 = f"v_mfma_f32_32x32x8_bf16 {vr(snew,16)}, {vr(cur['K4'],2)}, {vr(Q4[q],2)}, {vr(snew,16)}"
    pv1 = f"v_smfmac_f32_32x32x32_bf16 {vr(O[q],16)}, {vr(cur['V0'],4)}, {vr(sb,8)}, v{IDX}"
    tt = t % 4
    D = []
    if q == 0:
        D = [f"ds_read_b128 {vr(nxt['V1'],4)}, v{aV1} offset:{tt*TS}", f"ds_read2st64_b64 {vr(nxt['K16'],4)}, v{aK16} offset0:{6*tt} offset1:{6*tt+1}",
             f"ds_read_b64 {vr(nxt['K4'],2)}, v{aK4} offset:{tt*TS}", f"ds_read_b128 {vr(nxt['V0'],4)}, v{aV0} offset:{tt*TS}"]
    n = len(extra_m)
    if n == 0: ms, gaps = [[pv2], [qk1], [qk2], [pv1]], [2, 4, 4, 4, 2]
    elif n == 1: ms, gaps = [[pv2], [qk1], extra_m[0], [qk2], [pv1]], [2, 3, 3, 3, 4, 1]
    else: ms, gaps = [[pv2], extra_m[0], [qk1], extra_m[1], [qk2], [pv1]], [2, 2, 3, 3, 2, 3, 1]
    fill = list(fill or [])
    out = []; e = 0
    for i, g in enumerate(gaps):
        out += [f"v_exp_f32 v{sb+j}, v{sb+j}" for j in range(e, e + g)]; e += g
        if i < len(ms):
            out += ms[i]
            if D: out.append(D.pop(0))
            nf = -(-len(fill) // (len(ms) - i))
            if q == 0 and i < len(ms) - 1 and D: nf = min(nf, 1)
            for f in fill[:nf]: out += f if isinstance(f, list) else [f]
            fill = fill[nf:]
    return out

def resolve(items, pro=()):
    vm = [(i, it[1]) for i, it in enumerate(items) if isinstance(it, tuple) and it[0] == 'vm']
    out = []
    for i, it in enumerate(items):
        if not isinstance(it, tuple): out.append(it)
        elif it[0] == 'vm': out.append(it[2])
        else:
            before = [t for j, t in vm if j < i]; after = [t for j, t in vm if j > i]
            seq = after + before
            last = max(idx for idx, t in enumerate(seq) if t in it[1])
            n = len(seq) - 1 - last
            seq = list(pro) + before
            hit = [idx for idx, t in enumerate(seq) if t in it[1]]
            if hit: n = min(n, len(seq) - 1 - max(hit))
            out.append(f"s_waitcnt vmcnt({n}){it[2]}")
    return out

def chunk_head(first_wait):
    return [f"v_add_u32 v{a}, s{DELTA}, v{a}" for a in (aK16, aK4, aV0, aV1)] + [first_wait, "s_barrier"]
def chunk_book():
    return [f"s_add_u32 s{DSRC}, s{DSRC}, {4*2560}\ns_mov_b32 s{DELTA}, {CH}\ns_cmp_eq_u32 s{DSLOT}, s{DELTA}\ns_cselect_b32 s{DELTA}, {(-2*CH) & 0xffffffff}, s{DELTA}",
            f"s_add_u32 s{DSLOT}, s{DSLOT}, {CH}\ns_cmp_eq_u32 s{DSLOT}, {3*CH}\ns_cselect_b32 s{DSLOT}, 0, s{DSLOT}\ns_add_u32 s{CNT}, s{CNT}, 1"]

WOL = [114688 - 8192, 0]
NWL = [14, 8]
def wo_frag(g, f):
    nu = 3 - g
    return f // nu, f % nu

def attn_main(k, end):
    full = OPT.get('upto', 4) >= 4
    stamp(k, 3)
    k(f"v_mov_b32 v12, 0\nv_mov_b32 v13, 0")
    for i in range(8): k(f"v_mov_b32 v{S[3]+8+i}, 0")
    zz = [f"v_mfma_f32_32x32x8_bf16 {vr(b,16)}, v[12:13], v[12:13], 0" for b in O + DA]
    k("s_waitcnt vmcnt(14)")
    qk(k, S[0], KS[1]['K16'], KS[1]['K4'], 0)
    qk(k, S[1], KS[1]['K16'], KS[1]['K4'], 1)
    k("\n".join(zz[:2]))
    for i in range(4): k(f"v_mov_b32 v{KS[1]['V1']+i}, 0")
    k(f"s_mov_b32 s{CNT}, 0\ns_mov_b32 s{DSLOT}, {2*CH}\ns_mov_b32 s{DELTA}, 0\nv_cmp_eq_u32 vcc, 0, v2")
    rowmax(k, S[0], S[2], True)
    k(zz[2])
    rowmax(k, S[1], S[2]+1, True)
    k(zz[3])
    setpad(k, S[2], 0, S[2]+2, S[2]+3, S[2]+4)
    k(zz[4])
    setpad(k, S[2]+1, 1, S[2]+2, S[2]+3, S[2]+4)
    k("s_waitcnt vmcnt(6)\ns_nop 0")
    qk(k, S[0], KT16, KT4, 0)
    qk(k, S[1], KT16, KT4, 1)
    k(f"""s_bfe_u32 s{BLK}, s2, 0x30003
    s_add_u32 s{BLK}, s{BLK}, s{NB}
    s_mul_i32 s23, s{BLK}, 11
    s_lshr_b32 s23, s23, 5
    s_mul_i32 s23, s23, 3
    s_sub_u32 s{BLK}, s{BLK}, s23
    s_mul_i32 s23, s{KQ}, 3
    s_add_u32 s23, s23, s{BLK}
    s_mul_i32 s23, s23, 9
    s_mul_i32 s{SH}, s{TB}, 108
    s_add_u32 s{SH}, s{SH}, s23
    s_lshl_b32 s{SH}, s{SH}, 10
    s_add_u32 s{SH}, s{SH}, {WS_HF}
    s_mul_i32 s22, s{NB}, 5
    s_lshl_b32 s28, s{GRP}, 1
    s_add_u32 s22, s22, s28
    s_mul_i32 s{SWT}, s23, 20
    s_add_u32 s{SWT}, s{SWT}, s22
    s_lshl_b32 s{SWT}, s{SWT}, 10
    s_add_u32 s{SWT}, s{SWT}, {WS_WT}
    s_add_u32 s22, s22, s{GRP}
    s_lshl_b32 s28, s{KQ}, 3
    s_add_u32 s28, s28, 108
    s_mul_i32 s34, s28, 20
    s_add_u32 s34, s34, s22
    s_lshl_b32 s34, s34, 10
    s_add_u32 s34, s34, {WS_WT}
    s_lshl_b32 s28, s{KQ}, 1
    s_add_u32 s28, s28, 140
    s_mul_i32 s35, s28, 20
    s_add_u32 s35, s35, s22
    s_lshl_b32 s35, s35, 10
    s_add_u32 s35, s35, {WS_WT}
    s_lshl_b32 s32, s{TAB+2}, 5
    s_add_u32 s32, s32, s{TAB+1}
    s_lshl_b32 s32, s32, 7
    s_add_u32 s32, s32, {WS_FH}
    s_lshr_b32 s33, s{TB}, 3
    s_lshl_b32 s33, s33, 12
    s_add_u32 s33, s33, {WS_FH}
    s_add_u32 s23, s{TAB}, s{S_WAVE}
    s_cmp_eq_u32 s23, 0
    s_cselect_b32 s42, 1, 63
    v_lshlrev_b32 v12, 7, v0
    v_mov_b32 v13, 1""")
    if full:
        nw = k.lab("nw")
        k(f"s_add_u32 s23, s{TAB}, s{GRP}\ns_cmp_eq_u32 s23, 0\ns_cbranch_scc1 {nw}\ns_waitcnt vmcnt(3)")
        k.label(nw)
    stamp(k, 4)
    if OPT.get('stamp'): k("s_waitcnt lgkmcnt(0)")
    loop = k.lab("al")
    k(".p2align 6")
    k.label(loop)
    items = []
    for p in range(8):
        if p == 0:
            items += chunk_head("s_waitcnt lgkmcnt(0)" if full else "s_waitcnt vmcnt(3) lgkmcnt(0)")
            if full:
                nf = k.lab("nf")
                items += [f"s_cmp_lg_u32 s{CNT}, s42\ns_cbranch_scc1 {nf}\ns_mov_b64 exec, 1\nbuffer_store_dword v13, v12, {ws}, s32 offen sc1\ns_mov_b64 exec, -1\n{nf}:"]
        elif p % 2 == 0: items.append("s_waitcnt lgkmcnt(0)")
        if p % 2 == 0: items.append(f"s_setprio {3 - p//2}")
        fill = []
        if p == 1:
            d = kv_dma(); fill = [f"s_add_u32 m0, s{DLDS}, s{DSLOT}\ns_nop 0\n" + d[0], d[1], d[2]]
        if p == 3:
            fill = chunk_book()
            if not full: fill.append(f"s_cmp_eq_u32 s{CNT}, 6\ns_cselect_b32 s23, {32*2560}, 0\ns_sub_u32 s{DSRC}, s{DSRC}, s23")
        if p == 5 and full:
            n2 = k.lab("n2")
            fill = [f"s_cmp_lg_u32 s{CNT}, 2\ns_cbranch_scc1 {n2}\ns_mov_b64 exec, 0x3ffff\nbuffer_load_dword v14, v12, {ws}, s33 offen sc1\ns_mov_b64 exec, -1\n{n2}:"]
        items += phase(p, fill=fill)
    k("\n".join(items))
    if full: k("s_waitcnt vmcnt(0)")
    k(f"s_cmp_lg_u32 s{CNT}, {2 if full else 8}\ns_cbranch_scc1 {loop}")
    join = k.lab("aj")
    if full:
        stamp(k, 5)
        pl, ok = k.lab("ph"), k.lab("ok")
        k(f"s_mov_b64 exec, 0x3ffff\ns_mov_b32 s21, {SPIN}")
        k.label(pl)
        k(f"v_cmp_ne_u32 vcc, 1, v14\ns_nop 1\ns_cmp_eq_u64 vcc, 0\ns_cbranch_scc1 {ok}\ns_sleep 6\nbuffer_load_dword v14, v12, {ws}, s33 offen sc1\ns_sub_u32 s21, s21, 1\ns_waitcnt vmcnt(0)\ns_cbranch_scc0 {pl}")
        k.label(ok)
        k("s_mov_b64 exec, -1")
        g1 = k.lab("g1")
        k(f"s_mov_b32 s{WI}, 0\ns_cmp_eq_u32 s{GRP}, 1\ns_cbranch_scc1 {g1}")
        for g in range(2):
            if g: k.label(g1)
            has2 = lambda j: (j % 9) % 2 == g
            uoff = [0, 1024, 2048] if g == 0 else [1024, 2048, 0]
            def loads(j):
                d = DS[j % 3]; L = [('vm', f"d{j%9}", f"buffer_load_dwordx4 {vr(d,4)}, v{gL}, {ws}, s{SH} offen {LD}")]
                for u in range(3 if has2(j) else 2):
                    L.append(('vm', f"d{j%9}", f"buffer_load_dwordx4 {vr(d+4+4*u,4)}, v{gL}, {ws}, s{SWT} offen offset:{uoff[u]} {LD}"))
                if j % 9 == 8:
                    L.append(f"s_add_u32 s{BLK}, s{BLK}, 1\ns_cmp_eq_u32 s{BLK}, 3\ns_cselect_b32 s{BLK}, 0, s{BLK}\ns_cselect_b32 s23, -26, 1\ns_lshl_b32 s22, s23, 10\ns_add_u32 s{SH}, s{SH}, s22\ns_mul_i32 s22, s23, 20480\ns_add_u32 s{SWT}, s{SWT}, s22")
                else:
                    L.append(f"s_add_u32 s{SH}, s{SH}, 1024\ns_add_u32 s{SWT}, s{SWT}, 20480")
                return L
            k(f"s_mul_i32 s43, s{KQ}, {NWL[g]*1024}\ns_add_u32 s43, s43, {WOL[g]}")
            pro = []
            for j in range(2):
                for it in loads(j):
                    k(it[2] if isinstance(it, tuple) else it)
                    if isinstance(it, tuple): pro.append(it[1])
            mf = []
            for j in range(9):
                d = DS[j % 3]
                for u in range(3 if has2(j) else 2):
                    it = [f"v_mfma_f32_32x32x16_bf16 {vr(DA[u],16)}, {vr(d+4+4*u,4)}, {vr(d,4)}, {vr(DA[u],16)}"]
                    if u == 0: it = [('wait', [f"d{j}"], "")] + it
                    mf.append((j, u, it))
            nper = [(len(mf) * (p + 1)) // 16 - (len(mf) * p) // 16 for p in range(16)]
            npf = 5 if g == 0 else 3
            def wo_dma(n):
                nu = 3 - g
                return ('vm', 'wo', f"""s_min_u32 s23, s{WI}, {NWL[g]-1}
                s_mul_i32 s22, s23, {171 if nu == 3 else 256}
                s_lshr_b32 s22, s22, 9
                s_mul_i32 s22, s22, {20480 - 1024*nu}
                s_lshl_b32 s23, s23, 10
                s_add_u32 m0, s43, s23
                s_add_u32 s22, s22, s23
                s_add_u32 s22, s22, s34
                s_add_u32 s{WI}, s{WI}, 1
                buffer_load_dwordx4 v{gL}, {ws}, s22 offen {LD} lds""")
            items = []; mi = 0; pref = [wo_dma(n) for n in range(npf)]
            for p in range(16):
                pp = p % 8
                if pp == 0: items += chunk_head(('wait', [f"kv{p//8}"], " lgkmcnt(0)"))
                elif pp % 2 == 0: items.append("s_waitcnt lgkmcnt(0)")
                if pp % 2 == 0: items.append(f"s_setprio {3 - pp//2}")
                ex = mf[mi:mi + nper[p]]; mi += nper[p]
                fill = []
                if pp == 1:
                    tag = f"kv{p//8}"
                    f0 = NWL[g] + 3 * (p // 8)
                    srcs = []
                    for n in range(3):
                        j_, u_ = wo_frag(g, f0 + n)
                        base = ("s34", j_ * 20480) if j_ < 8 else ("s35", (j_ - 8) * 20480)
                        srcs.append(f"s_add_u32 s{28+n}, {base[0]}, {base[1] + 1024*u_ - 1024*n}")
                    fill.append("\n".join(srcs) + f"\ns_cmp_ge_u32 s{CNT}, 6\n" + "\n".join(f"s_cselect_b32 s{28+n}, s{28+n}, s{DSRC}" for n in range(3))
                                + f"\ns_cselect_b64 s[12:13], -1, {sr(M32,2)}\ns_add_u32 m0, s{DLDS}, s{DSLOT}")
                    fill.append([('vm', tag, f"buffer_load_dwordx4 v{gL}, {ws}, s28 offen {LD} lds"), ('vm', tag, f"buffer_load_dwordx4 v{gL}, {ws}, s29 offen offset:1024 {LD} lds")])
                    fill.append([('vm', tag, f"s_mov_b64 exec, s[12:13]\nbuffer_load_dwordx4 v{gL}, {ws}, s30 offen offset:2048 {LD} lds\ns_mov_b64 exec, -1")])
                if pp == 3: fill += chunk_book()
                if pp in (5, 7) or (pp == 6 and g == 0 and p < 8):
                    if pref: fill.append([pref.pop(0)])
                exm = []
                for (j, u, it) in ex:
                    it = list(it)
                    if u == 0: it += loads(j + 2)
                    exm.append(it)
                items += phase(p, exm, fill)
            assert mi == len(mf) and not pref
            lp = k.lab("gl")
            k(".p2align 6")
            k.label(lp)
            k("\n".join(resolve(items, pro)))
            k(f"s_cmp_lg_u32 s{CNT}, 8\ns_cbranch_scc1 {lp}")
            if g == 0: k(f"s_branch {join}")
    k.label(join)
    stamp(k, 6)
    k(f"s_setprio 0\ns_waitcnt vmcnt(0) lgkmcnt(0)")
    k(f"v_smfmac_f32_32x32x32_bf16 {vr(O[1],16)}, {vr(KS[1]['V1'],4)}, {vr(S[3]+8,8)}, v{IDX}")
    MB = RB + (7 % 3) * CH
    k(f"s_mul_i32 s28, s{S_WAVE}, 3072\ns_xor_b32 s29, s{S_WAVE}, 4\ns_mul_i32 s29, s29, 3072\nv_add_u32 v12, s28, v{gL}\nv_add_u32 v13, s29, v{gL}")
    k("s_barrier")
    h1 = k.lab("h1"); hj = k.lab("hj")
    k(f"s_cmp_eq_u32 s{GRP}, 1\ns_nop 4\ns_cbranch_scc1 {h1}")
    for i in range(3): k(f"ds_write_b128 v12, {vr(O[1]+4*i,4)} offset:{MB+1024*i}")
    k(f"s_branch {hj}")
    k.label(h1)
    for i in range(3): k(f"ds_write_b128 v12, {vr(O[0]+4*i,4)} offset:{MB+1024*i}")
    k("s_nop 1")
    for i in range(12): k(f"v_mov_b32 v{O[0]+i}, v{O[1]+i}")
    for i in range(4): k(f"v_mov_b32 v{Q16[0]+i}, v{Q16[1]+i}")
    k(f"v_mov_b32 v{Q4[0]}, v{Q4[1]}\nv_mov_b32 v{Q4[0]+1}, v{Q4[1]+1}")
    k.label(hj)
    k(f"s_add_u32 s{QT}, s{QT}, s{GRP}\ns_mul_i32 s28, s{QT}, 40960\ns_add_u32 s28, s28, {WS_OF}\ns_lshl_b32 s29, s{HEAD}, 8\ns_add_u32 s29, s29, s28\ns_add_u32 s29, s29, 32768\ns_lshl_b32 s23, s{HEAD}, 10\ns_add_u32 s28, s28, s23")
    k("s_mov_b32 s30, 0x5f800000\ns_waitcnt lgkmcnt(0)\ns_barrier")
    OO = O[0]; X = S[0]
    for i in range(3): k(f"ds_read_b128 {vr(X+4*i,4)}, v13 offset:{MB+1024*i}")
    k("s_waitcnt lgkmcnt(0)")
    for i in range(0, 12, 2): k(f"v_pk_add_f32 {vr(OO+i,2)}, {vr(OO+i,2)}, {vr(X+i,2)}")
    norm = k.lab("norm"); slow = k.lab("slow")
    def getl():
        k(f"v_mov_b32 v12, v{OO+8}\nv_mov_b32 v13, v{OO+8}\ns_nop 1\nv_permlane32_swap_b32 v12, v13\ns_nop 1")
    getl()
    if OPT.get('slow'): k(f"s_branch {slow}")
    k(f"v_cmp_nle_f32 vcc, v13, s30\ns_nop 1\ns_cmp_lg_u64 vcc, 0\ns_cbranch_scc1 {slow}")
    k.label(norm)
    k("v_rcp_f32 v12, v13\ns_nop 0")
    if full: k(f"v_mul_f32 v12, v12, v{GQ}")
    for i in range(0, 12, 2): k(f"v_pk_mul_f32 {vr(OO+i,2)}, {vr(OO+i,2)}, v[12:13] op_sel_hi:[1,0]")
    for i in range(6): k(f"v_cvt_pk_bf16_f32 v{X+i}, v{OO+2*i}, v{OO+2*i+1}")
    k(f"buffer_store_dwordx4 {vr(X,4)}, v{gL}, {ws}, s28 offen sc1")
    k(f"s_mov_b64 exec, {sr(M32,2)}\nbuffer_store_dwordx2 {vr(X+4,2)}, v{T0}, {ws}, s29 offen sc1\ns_mov_b64 exec, -1")
    stamp(k, 7)
    if full: out_proj(k)
    if OPT.get('dbl'):
        l_ = k.lab("dbl")
        k("s_waitcnt vmcnt(0)\ns_memrealtime s[98:99]\ns_waitcnt lgkmcnt(0)\ns_sub_u32 s97, s98, s100")
        k.label(l_)
        k(f"s_sleep 1\ns_memrealtime s[94:95]\ns_waitcnt lgkmcnt(0)\ns_sub_u32 s94, s94, s98\ns_cmp_lt_u32 s94, s97\ns_cbranch_scc1 {l_}")
    if OPT.get('stamp'): stamps_out(k, 11 if full else 9)
    k.label(end)
    k("s_endpgm")
    k.label(slow)
    st = KS[0]
    k(f"v_cmp_eq_u32 vcc, 0, v2\nv_mov_b32 v3, 0\ns_nop 1\nv_cndmask_b32 v{Q4[0]}, v3, v{Q4[0]}, vcc\nv_cndmask_b32 v{Q4[0]+1}, v3, v{Q4[0]+1}, vcc")
    k(f"v_mov_b32 v{st['K4']}, s{ONES}\nv_mov_b32 v{st['K4']+1}, s{K1}")
    for i in range(4): k(f"v_mov_b32 v{st['V0']+i}, s{ONES}\nv_mov_b32 v{st['V1']+i}, s{ONES}")
    k(f"v_mov_b32 v{S[2]}, 0xff800000\ns_mov_b32 s{CNT}, 0")
    def pk(dst, skew):
        k(f"s_sub_u32 s{dst}, s{CNT}, {skew}\ns_and_b32 s{dst}, s{dst}, 31\ns_and_b32 s23, s{CNT}, 32\ns_or_b32 s{dst}, s{dst}, s23\ns_mul_i32 s{dst}, s{dst}, 2560\ns_add_u32 s{dst}, s{dst}, s{KVB}")
    def ldk():
        pk(22, 2)
        k(f"buffer_load_dwordx2 {vr(st['K16'],2)}, v{T0}, {ws}, s22 offen {LD}\nbuffer_load_dwordx2 {vr(st['K16']+2,2)}, v{T0}, {ws}, s22 offen offset:512 {LD}")
        k(f"s_mov_b64 exec, {sr(M32,2)}\nbuffer_load_dwordx2 {vr(st['K4'],2)}, v{T0}, {ws}, s22 offen offset:1024 {LD}\ns_mov_b64 exec, -1")
    l1 = k.lab("p1"); k.label(l1)
    ldk()
    k("s_waitcnt vmcnt(0)")
    qk(k, S[0], st['K16'], st['K4'], 0)
    k("s_nop 11")
    rowmax(k, S[0], S[2], False)
    k(f"s_add_u32 s{CNT}, s{CNT}, 1\ns_cmp_lg_u32 s{CNT}, 64\ns_cbranch_scc1 {l1}")
    setpad(k, S[2], 0, S[2]+2, S[2]+3, S[2]+4)
    for i in range(16): k(f"v_mov_b32 v{OO+i}, 0")
    k(f"s_mov_b32 s{CNT}, 0")
    l2 = k.lab("p2"); k.label(l2)
    ldk()
    pk(31, 1)
    k(f"s_mov_b64 exec, {sr(M20,2)}")
    k(f"buffer_load_dwordx4 {vr(st['V0'],4)}, v{T1}, {ws}, s31 offen offset:1280 {LD}")
    k(f"buffer_load_dwordx4 {vr(st['V1'],4)}, v{T1}, {ws}, s31 offen offset:1920 {LD}")
    k("s_mov_b64 exec, -1\ns_waitcnt vmcnt(0)")
    qk(k, S[0], st['K16'], st['K4'], 0)
    k("s_nop 11")
    for i in range(16): k(f"v_exp_f32 v{S[0]+i}, v{S[0]+i}")
    k("s_nop 1")
    k(f"v_smfmac_f32_32x32x32_bf16 {vr(OO,16)}, {vr(st['V0'],4)}, {vr(S[0],8)}, v{IDX}")
    k(f"v_smfmac_f32_32x32x32_bf16 {vr(OO,16)}, {vr(st['V1'],4)}, {vr(S[0]+8,8)}, v{IDX}")
    k(f"s_add_u32 s{CNT}, s{CNT}, 1\ns_cmp_lg_u32 s{CNT}, 64\ns_cbranch_scc1 {l2}")
    k("s_nop 11")
    getl()
    k(f"s_branch {norm}")

def out_proj(k):
    OFR = 16
    WR = [64 + 4 * i for i in range(12)] + [160 + 4 * i for i in range(18)]
    MB = RB + (7 % 3) * CH
    k(f"v_sub_f32 v12, 1.0, v{GO}\ns_bfe_u32 s23, s2, 0x30003\ns_lshl_b32 s23, s23, 5\ns_lshl_b32 s31, s23, 7\ns_add_u32 s31, s31, {WS_FO}\ns_add_u32 s23, s23, s{HEAD}\ns_lshl_b32 s30, s23, 7\ns_add_u32 s30, s30, {WS_FO}")
    for u in range(3):
        for i in range(0, 16, 2): k(f"v_pk_mul_f32 {vr(DA[u]+i,2)}, {vr(DA[u]+i,2)}, v[12:13] op_sel_hi:[1,0]")
    k(f"v_mov_b32 v13, 1\nv_lshlrev_b32 v14, 7, v1\nv_add_u32 v3, s43, v{gL}\nv_add_u32 v4, s{DLDS}, v{gL}")
    k("s_waitcnt vmcnt(0)\ns_barrier")
    nf = k.lab("nf")
    k(f"s_cmp_lg_u32 s{S_WAVE}, 0\ns_cbranch_scc1 {nf}\ns_mov_b64 exec, 1\nbuffer_store_dword v13, v14, {ws}, s30 offen sc1\ns_mov_b64 exec, -1")
    k.label(nf)
    stamp(k, 8)
    k(f"s_mul_i32 s28, s{TB}, 40960\ns_add_u32 s28, s28, {WS_OF}\ns_lshl_b32 s23, s{KQ}, 11\ns_add_u32 s29, s28, s23\ns_add_u32 s29, s29, 32768\ns_lshl_b32 s23, s{KQ}, 13\ns_add_u32 s28, s28, s23\ns_add_u32 s33, s28, 4096")
    k(f"v_lshlrev_b32 v5, 3, v1\nv_lshl_add_u32 v5, v2, 9, v5\ns_lshl_b32 s23, s{KQ}, 12\nv_add_u32 v6, s23, v{gL}")
    k(f"s_mov_b32 s{SX}, s{P_OUT}\ns_mov_b32 s{SX+1}, s{P_OUT+1}")
    g1, fin = k.lab("o1"), k.lab("of")
    k(f"s_cmp_eq_u32 s{GRP}, 1\ns_cbranch_scc1 {g1}")
    for g in range(2):
        if g: k.label(g1)
        nu = 3 - g; nf_ = 10 * nu; nl = NWL[g]
        dir0 = nl + 6
        for f in range(dir0, nf_):
            j_, u_ = wo_frag(g, f)
            base = ("s34", j_ * 20480) if j_ < 8 else ("s35", (j_ - 8) * 20480)
            if u_ == 0 or f == dir0: k(f"s_add_u32 s22, {base[0]}, {base[1]}")
            k(f"buffer_load_dwordx4 {vr(WR[f],4)}, v{gL}, {ws}, s22 offen offset:{1024*u_} {LD}")
        if g == 1:
            for q in range(4): k(f"ds_write_b128 v6, {vr(DA[2]+4*q,4)} offset:{MB+1024*q}")
        for f in range(dir0):
            if f < nl: k(f"ds_read_b128 {vr(WR[f],4)}, v3 offset:{1024*f}")
            else:
                c = 6 + (f - nl) // 3
                k(f"ds_read_b128 {vr(WR[f],4)}, v4 offset:{((c+2) % 3)*CH + 1024*((f - nl) % 3)}")
            if f % 12 == 11: k("s_waitcnt lgkmcnt(4)")
        pl = k.lab("po")
        if g == 1:
            np_, p1 = k.lab("np"), k.lab("p1")
            k(f"s_cmp_lg_u32 s{S_WAVE}, 4\ns_cbranch_scc1 {np_}\ns_mov_b64 exec, {sr(M32,2)}\ns_mov_b32 s21, {SPIN}\ns_branch {p1}")
            k.label(pl)
            k(f"s_sleep {OPT.get('slo', 1)}")
            k.label(p1)
            k(f"buffer_load_dword v13, v14, {ws}, s31 offen sc1\ns_sub_u32 s21, s21, 1\ns_waitcnt vmcnt(0)\nv_cmp_ne_u32 vcc, 1, v13\ns_cselect_b64 exec, 0, exec\ns_and_b64 vcc, vcc, exec\ns_cbranch_scc1 {pl}")
            k("s_mov_b64 exec, -1")
            k.label(np_)
        k("s_waitcnt vmcnt(0)\ns_barrier")
        stamp(k, 9)
        for j in range(8): k(f"buffer_load_dwordx4 {vr(OFR+4*j,4)}, v{gL}, {ws}, s{28 if j < 4 else 33} offen offset:{1024*(j%4)} {LD}")
        for j in range(2):
            for h in range(2): k(f"buffer_load_dwordx2 {vr(OFR+32+4*j+2*h,2)}, v5, {ws}, s29 offen offset:{1024*j+256*h} {LD}")
        k("s_waitcnt lgkmcnt(0)")
        for j in range(10):
            k(f"s_waitcnt vmcnt({11-j if j < 8 else (2 if j == 8 else 0)})")
            for u in range(nu):
                k(f"v_mfma_f32_32x32x16_bf16 {vr(DA[u],16)}, {vr(WR[j*nu+u],4)}, {vr(OFR+4*j,4)}, {vr(DA[u],16)}")
        k(f"s_lshl_b32 s23, s{KQ}, 10\ns_add_u32 s23, s23, {WOL[g]}\nv_add_u32 v4, s23, v{gL}\ns_lshl_b32 s23, s{KQ}, 10\ns_add_u32 s23, s23, {MB}\nv_add_u32 v6, s23, v{gL}")
        k(f"v_mul_u32_u24 v7, 1280, v1\nv_lshl_add_u32 v7, v2, 3, v7\ns_mul_i32 s28, s{TB}, 40960\ns_mul_i32 s23, s{NB}, 320\ns_add_u32 s28, s28, s23\ns_lshl_b32 s23, s{KQ}, 4\ns_add_u32 s28, s28, s23")
        k(f"s_nop {1 if nu == 3 else 3}")
        for u in range(nu):
            for q in range(4): k(f"ds_write_b128 v3, {vr(DA[u]+4*q,4)} offset:{4096*u+1024*q}")
        k("s_waitcnt lgkmcnt(0)\ns_barrier")
        R = 160
        nr = 0
        for u in range(nu):
            for w_ in range(4): k(f"ds_read_b128 {vr(R+16*u+4*w_,4)}, v4 offset:{w_*nl*1024+4096*u}"); nr += 1
        if g == 0:
            k("s_waitcnt lgkmcnt(8)")
            for w_ in range(4): k(f"ds_read_b128 {vr(R+48+4*w_,4)}, v6 offset:{4096*w_}")
        for u in range(nu):
            a = R + 16 * u
            k(f"s_waitcnt lgkmcnt({(8 if u == 0 else 8 - 4*u if u < 2 else 0) if g == 0 else 4*(1-u)})")
            srcs = [a + 4, a + 8, a + 12] + ([R + 48, R + 52, R + 56, R + 60] if u == 2 else [])
            for s_ in srcs:
                for e in (0, 2): k(f"v_pk_add_f32 {vr(a+e,2)}, {vr(a+e,2)}, {vr(s_+e,2)}")
            k(f"v_cvt_pk_bf16_f32 v{a+4}, v{a}, v{a+1}\nv_cvt_pk_bf16_f32 v{a+5}, v{a+2}, v{a+3}")
            k(f"buffer_store_dwordx2 {vr(a+4,2)}, v7, {sr(SX,4)}, s28 offen offset:{64*(u + 3*g)}")
        if g == 0: k(f"s_branch {fin}")
    k.label(fin)
```

```python
from common import *

OPT = {}
WS_WT = 0x1600000
WS_FH = 0x1900000
WS_FO = 0x1908000
WS_FQ = 0x1910000
SPIN = 400000
WS_STAMP = 0x1A00000
SZ['ws'] = 0x1A00000
LDS_ALL = 163840
XSLOT, WBASE, WSLOT, UOFF = 32768, 98304, 24640, 12320
K_GU, K_QK, K_V, K_G, K_SP = range(5)
GLDS = 147584

def wg_table():
    tab = [None] * 256
    R = OPT.get('R', 3)
    nq = 0
    rot = lambda cb, rb: ((OPT.get('rc', 0) * cb + OPT.get('rr', 1) * rb) % R) * OPT.get('rs', 10) // R
    for half in range(2):
        for qx in range(4):
            x = half + 2 * qx
            L = [(K_GU, (18 * qx + j) // 4, 4 * half + (18 * qx + j) % 4) for j in range(18)]
            L += [(K_V if 3 * qx + j // 4 >= 8 else K_QK, 3 * qx + j // 4, 4 * half + j % 4) for j in range(12)]
            for j, (kd, cb, rb) in enumerate(L):
                tab[x + 8 * j] = (kd, cb, rb, rot(cb, rb) | (nq << 8))
                if kd != K_GU: nq += 1
            tab[x + 8 * 30] = (K_G, 0, 4 * half + qx, 0)
            tab[x + 8 * 31] = (K_SP, x, 0, 0)
    return tab

P_X, P_WQKV, P_WO, P_WG, P_WU, P_WD, P_GW, P_OUT, P_DBG, P_WS = 36, 38, 40, 44, 46, 48, 50, 52, 54, 56
SX, SW, SWS = 8, 12, 16
TAB = 60
S_WAVE, S_KIND, S_PAR, S_STATE, S_SLOT, S_DELTA, S_CNT = 3, 4, 5, 6, 7, 20, 21
DUMMY = 15
SC = "sc1"

def stamp(k, i, mode=1):
    if OPT.get('stamp') == mode or (OPT.get('stamp') and i < 4 and mode == 1): k(f"{'s_memrealtime' if OPT.get('rt') else 's_memtime'} {sr(80+2*i,2)}")

def stamps_out(k, n):
    k("s_mov_b64 exec, -1\ns_waitcnt vmcnt(0) lgkmcnt(0)")
    k(f"{'s_memrealtime' if OPT.get('rt') else 's_memtime'} {sr(80+2*(n-1),2)}\ns_memrealtime s[14:15]\ns_waitcnt lgkmcnt(0)")
    k(f"s_lshl_b32 s22, s2, 3\ns_add_u32 s22, s22, s{S_WAVE}\ns_mul_i32 s22, s22, {4*12}\ns_add_u32 s22, s22, {WS_STAMP}\ns_add_u32 s{SWS+2}, s{SWS+2}, 0x400000")
    k("v_mov_b32 v1, 0\nv_mov_b32 v2, s81\nv_mov_b32 v3, s14")
    k(f"s_mov_b64 exec, 1\nbuffer_store_dword v2, v1, {sr(SWS,4)}, s22 offen\nbuffer_store_dword v3, v1, {sr(SWS,4)}, s22 offen offset:44")
    for i in range(1, n):
        k(f"s_sub_u32 s23, s{80+2*i}, s80\nv_mov_b32 v2, s23\nbuffer_store_dword v2, v1, {sr(SWS,4)}, s22 offen offset:{4*i}")

def prologue(k, tablabel, end):
    k(f"s_cmp_ge_u32 s2, 256\ns_cbranch_scc1 {end}")
    stamp(k, 0)
    if OPT.get('dbl'): k("s_memrealtime s[100:101]")
    if OPT.get('stamp'): k("s_memrealtime s[14:15]\ns_waitcnt lgkmcnt(0)\ns_mov_b32 s81, s14")
    k("s_load_dwordx16 s[36:51], s[0:1], 0\ns_load_dwordx4 s[52:55], s[0:1], 64\ns_load_dwordx2 s[56:57], s[0:1], 80")
    k("s_getpc_b64 s[58:59]")
    here = k.lab("pc")
    k.label(here)
    k(f"s_lshl_b32 s22, s2, 4\ns_add_u32 s22, s22, {tablabel}-{here}\ns_add_u32 s22, s58, s22\ns_addc_u32 s23, s59, 0")
    k(f"s_load_dwordx4 {sr(TAB,4)}, s[22:23], 0")
    if not OPT.get('nocodepf'):
        k(f"v_lshlrev_b32 v1, 7, v0\nv_min_u32 v1, {tablabel}-{here}, v1\nglobal_load_dword v{DUMMY}, v1, s[58:59]")
    k(f"v_lshrrev_b32 v1, 6, v0\nv_and_b32 v0, 63, v0\nv_readfirstlane_b32 s{S_WAVE}, v1")
    for r, n in ((SX, 'x'), (SWS, 'ws')):
        k(f"s_mov_b32 s{r+2}, {SZ[n]}\ns_mov_b32 s{r+3}, 0x20000")
    k(f"s_mov_b32 s{SW+3}, 0x20000")

def emit_table(k, tablabel):
    k(".p2align 6")
    k(f".type {tablabel},@object")
    k.label(tablabel)
    for e in wg_table(): k(".long %d, %d, %d, %d" % e)

def poll(k, load, mask, sleep, dst=3):
    pl, p1 = k.lab("pl"), k.lab("p1")
    k(f"s_mov_b64 exec, {mask}\ns_mov_b32 s21, {SPIN}\ns_branch {p1}")
    k.label(pl)
    k(f"s_sleep {sleep}")
    k.label(p1)
    k(f"{load}\ns_sub_u32 s21, s21, 1\ns_waitcnt vmcnt(0)\nv_cmp_ne_u32 vcc, 1, v{dst}\ns_cselect_b64 exec, 0, exec\ns_and_b64 vcc, vcc, exec\ns_cbranch_scc1 {pl}")
    k("s_mov_b64 exec, -1")
def wait_cleared(k):
    sk = k.lab("wc")
    k(f"s_cmp_lg_u32 s{S_WAVE}, 4\ns_cbranch_scc1 {sk}\nv_mov_b32 v13, 0")
    poll(k, f"global_load_dword v3, v13, {sr(P_DBG,2)} offset:128 sc1", 1, 4)
    k.label(sk)

PF = 72
def pf_setup(k, w, stage):
    k(f"""s_and_b32 s23, s{w}, 3
    s_mov_b32 s{PF}, s{P_WG}
    s_mov_b32 s{PF+1}, s{P_WG+1}
    s_mov_b32 s{PF+2}, {SZ['wg']}
    s_mov_b32 s{PF+3}, 0x20000
    s_movk_i32 s76, 864
    s_movk_i32 s77, 128
    s_mov_b32 s78, {64*3456}
    s_cmp_eq_u32 s23, 3
    s_cselect_b32 s{PF}, s{P_WU}, s{PF}
    s_cselect_b32 s{PF+1}, s{P_WU+1}, s{PF+1}
    s_cmp_eq_u32 s23, 1
    s_cselect_b32 s{PF}, s{P_WQKV}, s{PF}
    s_cselect_b32 s{PF+1}, s{P_WQKV+1}, s{PF+1}
    s_cselect_b32 s{PF+2}, {SZ['wqkv']}, s{PF+2}
    s_cselect_b32 s76, 960, s76
    s_cselect_b32 s78, {64*3840}, s78
    s_cmp_eq_u32 s23, 0
    s_cselect_b32 s{PF}, s{P_X}, s{PF}
    s_cselect_b32 s{PF+1}, s{P_X+1}, s{PF+1}
    s_cselect_b32 s{PF+2}, {SZ['x']}, s{PF+2}
    s_cselect_b32 s76, 10240, s76
    s_cselect_b32 s77, 1280, s77
    s_cselect_b32 s78, 128, s78
    s_mul_i32 s76, s76, s2""")
    if stage: k(f"s_mul_i32 s23, s78, {stage}\ns_add_u32 s76, s76, s23")
    k("s_lshl_b32 s23, s77, 3\ns_sub_u32 s78, s78, s23")
def pf_stage(k):
    for i in range(8): k(f"s_buffer_load_dword s79, {sr(PF,4)}, s76\ns_add_u32 s76, s76, s77")
    k("s_add_u32 s76, s76, s78")

def tj_addr(k):
    k(f"""v_lshlrev_b32 v24, 4, v0
    v_lshrrev_b32 v2, 4, v0
    v_bfe_u32 v3, v0, 2, 2
    v_xor_b32 v26, v2, v3
    v_lshlrev_b32 v26, 6, v26
    v_and_b32 v27, 3, v0
    v_lshl_add_u32 v26, v27, 4, v26
    v_mul_u32_u24 v2, 1280, v2
    v_add_u32 v25, v2, v26
    v_lshrrev_b32 v1, 5, v0
    v_lshlrev_b32 v1, 10, v1
    v_lshl_add_u32 v1, v3, 8, v1
    v_bfe_u32 v2, v0, 4, 1
    v_lshl_add_u32 v1, v2, 5, v1
    v_lshl_add_u32 v1, v27, 3, v1
    v_add_u32 v1, s31, v1""")
    for u in range(4): k(f"v_xor_b32 v2, {u}, v3\nv_lshl_add_u32 v{20+u}, v2, 6, v1")
def tj_load(k, job, dst, lds=0):
    SJ = 72
    k(f"""s_min_u32 s64, s{job}, 739
    s_mul_i32 s76, s64, 52429
    s_lshr_b32 s76, s76, 18
    s_mul_i32 s30, s76, 5
    s_sub_u32 s64, s64, s30
    s_lshl_b32 s65, s76, 4
    s_movk_i32 s66, {4*1280}
    s_movk_i32 s67, {8*1280}
    s_mov_b32 s{SJ}, s{P_WD}
    s_mov_b32 s{SJ+1}, s{P_WD+1}
    s_mov_b32 s{SJ+2}, {SZ['wd']}
    s_sub_u32 s30, s76, 108
    s_mul_i32 s23, s30, 20
    s_cmp_ge_u32 s76, 108
    s_cselect_b32 s65, s23, s65
    s_cselect_b32 s{SJ}, s{P_WO}, s{SJ}
    s_cselect_b32 s{SJ+1}, s{P_WO+1}, s{SJ+1}
    s_cselect_b32 s{SJ+2}, {SZ['wo']}, s{SJ+2}
    s_sub_u32 s30, s76, 140
    s_mul_i32 s23, s30, 80
    s_add_u32 s23, s23, 16
    s_cmp_ge_u32 s76, 140
    s_cselect_b32 s65, s23, s65
    s_cselect_b32 s66, {40*1280}, s66
    s_cselect_b32 s67, {20*1280}, s67
    s_mul_i32 s65, s65, 1280
    s_lshl_b32 s23, s64, 8
    s_add_u32 s65, s65, s23
    s_add_u32 m0, s31, {lds}
    s_add_u32 s30, s65, s66
    buffer_load_dwordx4 v25, {sr(SJ,4)}, s65 offen lds
    s_add_u32 m0, s31, {lds+1024}
    s_add_u32 s65, s65, s67
    buffer_load_dwordx4 v25, {sr(SJ,4)}, s30 offen lds
    s_add_u32 m0, s31, {lds+2048}
    s_add_u32 s30, s65, s66
    buffer_load_dwordx4 v25, {sr(SJ,4)}, s65 offen lds
    s_add_u32 m0, s31, {lds+3072}
    s_mul_i32 s23, s76, 20
    buffer_load_dwordx4 v25, {sr(SJ,4)}, s30 offen lds
    s_lshl_b32 s30, s64, 2
    s_add_u32 s23, s23, s30
    s_lshl_b32 s23, s23, 10
    s_add_u32 s{dst}, s23, {WS_WT}""")

def loader(k, spare):
    vX = 4
    lw = 22
    k(f"s_sub_u32 s{lw}, s{S_WAVE}, 4")
    k(f"""v_lshrrev_b32 v1, 3, v0
    s_lshl_b32 s23, s{lw}, 3
    v_add_u32 v1, s23, v1
    v_mul_u32_u24 v1, 1280, v1
    s_and_b32 s23, s{lw}, 1
    s_lshl_b32 s23, s23, 2
    v_lshrrev_b32 v2, 4, v0
    v_add_u32 v6, s23, v2
    v_and_b32 v3, 7, v0
    v_xor_b32 v6, v6, v3
    v_lshl_add_u32 v{vX}, v6, 4, v1""")
    k(f"s_and_b32 s23, s{lw}, 1\ns_mul_i32 s23, s23, {32*3456}\ns_movk_i32 s24, {3456-192}\ns_mul_i32 s25, s{lw}, {16*3840}\ns_movk_i32 s26, {3840-320}")
    for j in range(3):
        k(f"v_add_u32 v1, {64*j}, v0\nv_mul_u32_u24 v2, 1366, v1\nv_lshrrev_b32 v2, 14, v2\nv_lshl_add_u32 v1, v1, 4, s23\nv_mad_u32_u24 v{5+j}, v2, s24, v1")
    for j in range(5):
        k(f"v_add_u32 v1, {64*j}, v0\nv_mul_u32_u24 v2, 1639, v1\nv_lshrrev_b32 v2, 15, v2\nv_lshl_add_u32 v1, v1, 4, s25\nv_mad_u32_u24 v{8+j}, v2, s26, v1")
    k(f"s_lshl_b32 s24, s{lw}, 10\ns_mov_b32 s32, 0\ns_mov_b32 s33, {WBASE}")
    k("s_waitcnt lgkmcnt(0)")
    k(f"s_mov_b32 s{SX}, s{P_X}\ns_mov_b32 s{SX+1}, s{P_X+1}\ns_mov_b32 s{SWS}, s{P_WS}\ns_mov_b32 s{SWS+1}, s{P_WS+1}")
    k(f"s_cmp_eq_u32 s{TAB}, {K_SP}\ns_cbranch_scc1 {spare}")
    XO, WO, RX, RW = 26, 27, 34, 35
    k(f"s_mul_i32 s{XO}, s{TAB+2}, {256*1280}\ns_and_b32 s{RX}, s{TAB+3}, 0xff\ns_lshl_b32 s23, s{RX}, 7\ns_add_u32 s{XO}, s{XO}, s23\ns_mov_b32 s{RW}, s{RX}")
    def wb(n):
        k(f"s_waitcnt vmcnt({n})\ns_barrier")
        if OPT.get('bst'): bst()
    def bst():
        k("s_memtime s[96:97]\ns_waitcnt lgkmcnt(0)\ns_sub_u32 s96, s96, s80\ns_mov_b32 m0, s98\ns_add_u32 s98, s98, 1\nv_writelane_b32 v250, s96, m0")
    if OPT.get('bst'):
        k("s_mov_b32 s98, 0\nv_mov_b32 v250, 0")
        bst()
    def issueX():
        k(f"s_add_u32 s28, s32, s24")
        for j in range(8):
            k(f"s_add_u32 m0, s28, {4096*j}\ns_add_u32 s30, s{XO}, {j*40960}")
            k(f"buffer_load_dwordx4 v{vX}, {sr(SX,4)}, s30 offen lds")
        k(f"s_add_u32 s{RX}, s{RX}, 1\ns_cmp_eq_u32 s{RX}, 10\ns_cselect_b32 s{RX}, 0, s{RX}\ns_cselect_b32 s23, -9, 1\ns_lshl_b32 s23, s23, 7\ns_add_u32 s{XO}, s{XO}, s23")
        k(f"s_add_u32 s32, s32, {XSLOT}\ns_cmp_eq_u32 s32, {3*XSLOT}\ns_cselect_b32 s32, 0, s32")
    def issueW(gu):
        rs = 3456 if gu else 3840
        k(f"s_add_u32 s28, s33, s25")
        for j in range(6 if gu else 5):
            k(f"s_add_u32 m0, s28, {1024*j}")
            if gu and j == 3: k(f"s_add_u32 s30, s{WO}, {16*rs}")
            else: k("s_nop 0")
            k(f"buffer_load_dwordx4 v{(5 + j % 3) if gu else (8 + j)}, {sr(SW,4)}, s{30 if gu and j >= 3 else WO} offen lds")
        k(f"s_add_u32 s{RW}, s{RW}, 1\ns_cmp_eq_u32 s{RW}, 10\ns_cselect_b32 s{RW}, 0, s{RW}\ns_cselect_b32 s23, -9, 1\ns_mul_i32 s23, s23, {64*rs}\ns_add_u32 s{WO}, s{WO}, s23")
        k(f"s_xor_b32 s33, s33, {WBASE ^ (WBASE + WSLOT)}")
    PFN = OPT.get('pfn', 0)
    lq, ldone = k.lab("ldq"), k.lab("lddone")
    k(f"s_cmp_lg_u32 s{TAB}, {K_GU}\ns_cbranch_scc1 {lq}")
    for gu in (True, False):
        rs = 3456 if gu else 3840
        if gu:
            k(f"s_cmp_ge_u32 s{lw}, 2\ns_cselect_b32 s{SW}, s{P_WU}, s{P_WG}\ns_cselect_b32 s{SW+1}, s{P_WU+1}, s{P_WG+1}\ns_cselect_b32 s25, {UOFF}, 0\ns_mov_b32 s{SW+2}, {SZ['wg']}")
            k(f"s_and_b32 s23, s{lw}, 1\ns_mul_i32 s23, s23, 6144\ns_add_u32 s25, s25, s23")
        else:
            k.label(lq)
            k(f"s_mov_b32 s{SW}, s{P_WQKV}\ns_mov_b32 s{SW+1}, s{P_WQKV+1}\ns_mov_b32 s{SW+2}, {SZ['wqkv']}\ns_mul_i32 s25, s{lw}, 5120")
        k(f"s_mul_i32 s{WO}, s{TAB+1}, {192 if gu else 320}\ns_mul_i32 s23, s{RW}, {64*rs}\ns_add_u32 s{WO}, s{WO}, s23")
        nW = 6 if gu else 5
        l = k.lab("ll"); l1 = k.lab("l1"); l2 = k.lab("l2"); l3 = k.lab("l3")
        if not gu:
            k(f"s_lshl_b32 s31, s{lw}, 12\ns_add_u32 s31, s31, 147456\ns_mov_b32 s75, 0x20000\ns_lshr_b32 s77, s{TAB+3}, 8\ns_lshl_b32 s77, s77, 2\ns_add_u32 s77, s77, s{lw}\nv_mov_b32 v24, 0\nv_mov_b32 v25, 0")
            k(f"s_cmp_eq_u32 s{TAB}, {K_G}\ns_cselect_b32 s78, 0, {5 << OPT.get('j0', 4)}\ns_cselect_b32 s79, 0, {20 << OPT.get('j0', 4)}")
        k(f"s_mov_b32 s{S_CNT}, 0")
        k.label(l)
        issueW(gu)
        k(f"s_cmp_eq_u32 s{S_CNT}, 1\ns_cbranch_scc0 {l1}")
        wb(nW)
        if not gu: tj_addr(k)
        issueX()
        k.label(l1)
        k(f"s_cmp_eq_u32 s{S_CNT}, 9\ns_cbranch_scc1 {l3}")
        issueX()
        if not gu:
            ns_, nl, w12, nb_ = k.lab("ns"), k.lab("nl"), k.lab("w12"), k.lab("nb")
            k(f"s_bitcmp0_b32 s79, s{S_CNT}\ns_cbranch_scc1 {ns_}")
            for u in range(4): k(f"ds_read_b64_tr_b16 {vr(32+4*u,2)}, v{20+u}\nds_read_b64_tr_b16 {vr(34+4*u,2)}, v{20+u} offset:2048")
            k("s_waitcnt lgkmcnt(0)")
            for u in range(4): k(f"buffer_store_dwordx4 {vr(32+4*u,4)}, v24, {sr(SWS,4)}, s42 offen offset:{1024*u} {SC}")
            k(f"s_bitcmp0_b32 s78, s{S_CNT}\ns_cbranch_scc1 {w12}")
            k.label(ns_)
            k(f"s_bitcmp0_b32 s78, s{S_CNT}\ns_cbranch_scc1 {nl}")
            tj_load(k, 77, 42)
            k(f"s_add_u32 s77, s77, 384\ns_waitcnt vmcnt(16)\ns_bitcmp1_b32 s79, s{S_CNT}\ns_cbranch_scc1 {nb_}")
            k.label(w12)
            k("s_waitcnt vmcnt(12)")
            k.label(nb_)
            k(f"s_barrier\ns_branch {l2}")
            k.label(nl)
        k(f"s_cmp_eq_u32 s{S_CNT}, 0\ns_cbranch_scc1 {l2}")
        wb(8)
        k.label(l2)
        k(f"s_add_u32 s{S_CNT}, s{S_CNT}, 1\ns_branch {l}")
        k.label(l3)
        wb(0)
        wait_cleared(k)
        if gu: k(f"s_branch {ldone}")
    stamp(k, 5, 2)
    k("s_barrier")
    stamp(k, 6, 2)
    sk = k.lab("na")
    k(f"s_cmp_lg_u32 s{lw}, 0\ns_cbranch_scc1 {sk}")
    k(f"s_cmp_eq_u32 s{TAB}, {K_G}\ns_cselect_b32 s23, 12, s{TAB+1}\ns_lshl_b32 s23, s23, 3\ns_add_u32 s23, s23, s{TAB+2}\ns_lshl_b32 s23, s23, 7\ns_add_u32 s23, s23, {WS_FQ}")
    k(f"v_mov_b32 v3, 1\ns_mov_b64 exec, 1\nbuffer_store_dword v3, v24, {sr(SWS,4)}, s23 offen sc1\ns_mov_b64 exec, -1")
    stamp(k, 7, 2)
    k.label(sk)
    k.label(ldone)
    if OPT.get('bst'):
        k(f"s_lshl_b32 s23, s2, 7\ns_add_u32 s23, s23, {WS_STAMP + (1 << 20)}\ns_add_u32 s{SWS+2}, s{SWS+2}, 0x400000\nv_lshlrev_b32 v1, 2, v0\ns_mov_b64 exec, 0xffffffff")
        k(f"buffer_store_dword v250, v1, {sr(SWS,4)}, s23 offen\ns_waitcnt vmcnt(0)\ns_mov_b64 exec, -1\ns_sub_u32 s{SWS+2}, s{SWS+2}, 0x400000")

ACC = 64
XA = [4, 5, 6, 7]; WA = 8
XF = [16, 32]; WF = 48
ZR = 12
ET = 48
def zero_acc(base, n):
    return [f"v_mfma_f32_32x32x8_bf16 {vr(base+16*i,16)}, {vr(ZR,2)}, {vr(ZR,2)}, 0" for i in range(n)]

def gemm_loop(k, gu, vt):
    NT, NU = (4, 3) if gu else (2, 5)
    xf = XF if gu else [16, 24]; wf = WF if gu else 32
    rowb, ub = (192, 32) if gu else (320, 64)
    A = lambda i, j: ACC + 16 * (j * NT + i)
    xr = lambda kk: [f"ds_read_b128 {vr(xf[kk%2]+4*i,4)}, v{XA[kk%4]} offset:{4096*i}" for i in range(NT)]
    wr = lambda kk, j: [f"ds_read_b64_tr_b16 {vr(wf+4*j+2*jj,2)}, v{WA} offset:{(16*(kk%4)+4*jj)*rowb + ub*j}" for jj in range(2)]
    k("\n".join(xr(0)))
    for j in range(NU): k("\n".join(wr(0, j)))
    k(f"s_mov_b32 s{S_CNT}, 10\ns_mov_b32 s{S_SLOT}, 0\ns_mov_b32 s69, {WSLOT}")
    loop = k.lab("gl")
    k(".p2align 6")
    k.label(loop)
    jb = 0 if gu else 1
    for kk in range(4):
        k(f"s_waitcnt lgkmcnt({2*(NU-1)})")
        pend = xr(kk + 1)
        for j in range(NU):
            if j > 0 and not (kk == 3 and j > jb):
                k(f"s_waitcnt lgkmcnt({2*(NU-1) + NT if kk < 3 else 2*(NU-1-j)})")
            for i in range(NT):
                a, b = vr(wf + 4*j, 4), vr(xf[kk%2] + 4*i, 4)
                if vt: a, b = b, a
                k(f"v_mfma_f32_32x32x16_bf16 {vr(A(i,j),16)}, {a}, {b}, {vr(A(i,j),16)}")
                if i == NT - 1: pend = pend + wr(kk + 1, j)
                if kk == 3 and j == jb and i == NT - 1:
                    k(f"v_add_u32 v{XA[0]}, s{S_DELTA}, v{XA[0]}\nv_add_u32 v{WA}, s69, v{WA}\ns_sub_u32 s69, 0, s69")
                    nb = k.lab("nb")
                    k(f"s_waitcnt lgkmcnt(0)\ns_cmp_eq_u32 s{S_CNT}, 0\ns_cbranch_scc1 {nb}\ns_barrier")
                    k.label(nb)
                if not (kk == 3 and (j < jb or (j == jb and i < NT - 1))):
                    n = len(pend) if (j == NU - 1 and i == NT - 1) else min(len(pend), 2)
                    k("\n".join(pend[:n])); pend = pend[n:]
                if kk == 2 and j == NU - 1 and i == 0:
                    k(f"s_add_u32 s{S_SLOT}, s{S_SLOT}, 1\ns_cmp_eq_u32 s{S_SLOT}, 3\ns_cselect_b32 s{S_DELTA}, s70, s71\ns_cselect_b32 s{S_SLOT}, 0, s{S_SLOT}\ns_sub_u32 s{S_CNT}, s{S_CNT}, 1")
                if kk == 3 and j == NU - 1 and i == 0:
                    for a in XA[1:]: k(f"v_add_u32 v{a}, s{S_DELTA}, v{a}")
    k(f"s_cmp_lg_u32 s{S_CNT}, 0\ns_cbranch_scc1 {loop}")

def consumer(k, spare, pre_epilogue=None):
    ws = sr(SWS, 4)
    w = S_WAVE
    k("v_and_b32 v1, 31, v0\nv_lshrrev_b32 v2, 5, v0")
    k(f"v_mov_b32 v{ZR}, 0\nv_mov_b32 v{ZR+1}, 0")
    k(f"s_mov_b32 s70, {(-2*XSLOT) & 0xffffffff}\ns_mov_b32 s71, {XSLOT}")
    k("\n".join(zero_acc(ACC, 12)))
    k(f"v_bfe_u32 v3, v1, 1, 3\nv_xor_b32 v3, v3, v2\nv_lshlrev_b32 v56, 7, v1")
    for kk in range(4):
        k(f"v_xor_b32 v57, {2*kk}, v3\nv_lshl_add_u32 v{XA[kk]}, v57, 4, v56")
    k(f"v_bfe_u32 v3, v0, 2, 2\nv_lshl_add_u32 v56, v2, 3, v3\nv_bfe_u32 v57, v0, 4, 1\nv_and_b32 v58, 3, v0\nv_lshlrev_b32 v58, 3, v58")
    k(f"s_and_b32 s23, s{w}, 1\ns_mul_i32 s23, s23, 96\ns_add_u32 s23, s23, {WBASE}\ns_movk_i32 s24, 192\ns_movk_i32 s25, {UOFF}\ns_movk_i32 s26, 320")
    k(f"v_mad_u32_u24 v{WA}, v56, s24, v58\nv_mad_u32_u24 v{WA}, v57, s25, v{WA}\nv_add_u32 v{WA}, s23, v{WA}")
    k("v_lshlrev_b32 v59, 7, v0")
    k(f"v_mad_u32_u24 v9, v56, s26, v58\nv_lshl_add_u32 v9, v57, 5, v9\nv_add_u32 v9, {WBASE}, v9")
    k("s_waitcnt lgkmcnt(0)")
    k(f"s_mov_b32 s{SWS}, s{P_WS}\ns_mov_b32 s{SWS+1}, s{P_WS+1}")
    if OPT.get('xpf', 1):
        k(f"s_mov_b32 s{SX}, s{P_X}\ns_mov_b32 s{SX+1}, s{P_X+1}\ns_lshl_b32 s23, s2, 2\ns_add_u32 s23, s23, s{w}\ns_mul_i32 s23, s23, 2560\ns_mov_b64 exec, 0xfffff")
        k(f"buffer_load_dword v{DUMMY}, v59, {sr(SX,4)}, s23 offen\ns_mov_b64 exec, -1")
    if OPT.get('wpf', 0):
        n = OPT['wpf']
        k(f"""s_mov_b32 s{SW}, s{P_WG}
        s_mov_b32 s{SW+1}, s{P_WG+1}
        s_movk_i32 s24, {864*n}
        s_cmp_eq_u32 s{w}, 1
        s_cselect_b32 s{SW}, s{P_WQKV}, s{SW}
        s_cselect_b32 s{SW+1}, s{P_WQKV+1}, s{SW+1}
        s_cselect_b32 s24, {960*n}, s24
        s_cmp_eq_u32 s{w}, 3
        s_cselect_b32 s{SW}, s{P_WU}, s{SW}
        s_cselect_b32 s{SW+1}, s{P_WU+1}, s{SW+1}
        s_mul_i32 s23, s24, s2
        s_add_u32 s{SW+2}, s23, s24
        s_cmp_eq_u32 s{w}, 0
        s_cselect_b32 s{SW+2}, 0, s{SW+2}
        buffer_load_dword v{DUMMY}, v59, {sr(SW,4)}, s23 offen""")
    if OPT.get('pfn', 0):
        pf_setup(k, w, 0)
        l = k.lab("pf")
        k(f"s_mov_b32 s{S_CNT}, {OPT.get('pfn', 0)}")
        k.label(l)
        pf_stage(k)
        k(f"s_sub_u32 s{S_CNT}, s{S_CNT}, 1\ns_cmp_lg_u32 s{S_CNT}, 0\ns_cbranch_scc1 {l}")
    done, lq, lv, qd, lg = k.lab("cdone"), k.lab("cq"), k.lab("cv"), k.lab("qd"), k.lab("cg")
    k(f"s_cmp_eq_u32 s{TAB}, {K_SP}\ns_cbranch_scc1 {spare}\ns_cmp_lg_u32 s{TAB}, {K_GU}\ns_cbranch_scc1 {lq}")
    k(f"s_lshr_b32 s23, s{w}, 1\ns_lshl_b32 s23, s23, 14")
    for a in XA: k(f"v_add_u32 v{a}, s23, v{a}")
    k("s_barrier")
    stamp(k, 1)
    k("s_waitcnt lgkmcnt(0)")
    gemm_loop(k, True, False)
    stamp(k, 2)
    k(f"s_lshl_b32 s31, s{TAB+2}, 1\ns_lshr_b32 s26, s{w}, 1\ns_add_u32 s31, s31, s26\ns_mul_i32 s34, s31, {4*108}\ns_lshl_b32 s29, s{TAB+1}, 1\ns_and_b32 s27, s{w}, 1\ns_add_u32 s29, s29, s27\ns_mul_i32 s29, s29, 3")
    k(f"s_add_u32 s34, s34, s29\ns_lshl_b32 s34, s34, 10\ns_add_u32 s43, s34, {WS_HF}\ns_mov_b32 s32, {f32hex(-LOG2E)}")
    k("s_waitcnt lgkmcnt(0)")
    for n in range(13):
        if n == OPT.get('e1', 12): pre_epilogue(k)
        if n == OPT.get('e2', 12): k("s_barrier")
        if n == 12: break
        a = ACC + 16 * n; t = ACC + 4 * n
        for e in range(0, 8, 2): k(f"v_pk_mul_f32 {vr(a+e,2)}, {vr(a+e,2)}, s[32:33] op_sel_hi:[1,0]")
        for e in range(8): k(f"v_exp_f32 v{a+e}, v{a+e}")
        for e in range(0, 8, 2): k(f"v_pk_add_f32 {vr(a+e,2)}, {vr(a+e,2)}, 1.0 op_sel_hi:[1,0]")
        for e in range(8): k(f"v_rcp_f32 v{a+e}, v{a+e}")
        for e in range(0, 8, 2): k(f"v_pk_mul_f32 {vr(a+e,2)}, {vr(a+e,2)}, {vr(a+8+e,2)}")
        for e in range(4): k(f"v_cvt_pk_bf16_f32 v{t+e}, v{a+2*e}, v{a+2*e+1}")
    k(f"s_branch {done}")
    k.label(lq)
    k(f"s_lshl_b32 s23, s{w}, 13\nv_mov_b32 v{WA}, v9")
    for a in XA: k(f"v_add_u32 v{a}, s23, v{a}")
    k(f"s_lshl_b32 s65, s{TAB+2}, 3\ns_lshl_b32 s23, s{w}, 1\ns_add_u32 s65, s65, s23\ns_and_b32 s29, s{TAB+1}, 3")
    k(f"s_cmp_eq_u32 s{TAB}, {K_G}\ns_cbranch_scc1 {lg}\ns_cmp_eq_u32 s{TAB}, {K_V}\ns_cbranch_scc1 {lv}")
    for vt in (False, True):
        if vt:
            k.label(lv)
            k(f"s_movk_i32 s43, 2560\ns_mov_b32 s66, {WS_KV + 1280}\ns_mov_b32 s67, 1\ns_mov_b32 s64, {64*2560}\ns_mov_b32 s42, {64*2560-640}")
            k("v_and_b32 v3, 3, v1\nv_lshlrev_b32 v3, 4, v3\nv_lshl_add_u32 v3, v2, 6, v3\nv_lshrrev_b32 v58, 2, v1")
            for u in range(5):
                k(f"v_add_u32 v56, {8*u}, v58\nv_mul_u32_u24 v57, 205, v56\nv_lshrrev_b32 v57, 10, v57\nv_lshl_add_u32 v56, v56, 7, v3\nv_mad_u32_u24 v{224+u}, v57, s42, v56")
        else:
            k(f"""s_mov_b32 s64, {64*1280}
            s_mov_b32 s42, {f32hex(QSCALE)}
            s_movk_i32 s43, 1280
            s_mov_b32 s66, {WS_QF}
            s_cmp_ge_u32 s{TAB+1}, 4
            s_cselect_b32 s64, {64*2560}, s64
            s_cselect_b32 s42, 1.0, s42
            s_cselect_b32 s43, 2560, s43
            s_cselect_b32 s66, {WS_KV}, s66
            s_cselect_b32 s67, 2, 0
            s_cselect_b64 vcc, -1, 0
            v_and_b32 v3, 0x13, v1
            v_and_b32 v56, 4, v1
            v_lshl_or_b32 v3, v56, 1, v3
            v_bfe_u32 v56, v1, 3, 1
            v_lshl_or_b32 v3, v56, 2, v3
            v_cndmask_b32 v3, v1, v3, vcc
            v_lshlrev_b32 v224, 4, v3
            v_lshl_add_u32 v224, v2, 9, v224
            v_lshlrev_b32 v3, 3, v3
            v_mad_u32_u24 v225, v2, s64, v3""")
        k(f"s_lshl_b32 s29, s29, 3\ns_mul_i32 s29, s29, s64\ns_add_u32 s66, s66, s29")
        for i in range(2):
            k(f"s_add_u32 s28, s65, {i}\ns_sub_u32 s29, s28, s67\ns_and_b32 s29, s29, 31\ns_and_b32 s28, s28, 32\ns_or_b32 s28, s28, s29\ns_mul_i32 s28, s28, s43\ns_add_u32 s{76+i}, s28, s66")
        k("s_barrier")
        stamp(k, 1)
        k("s_waitcnt lgkmcnt(0)")
        gemm_loop(k, False, vt)
        stamp(k, 2)
        k("s_waitcnt lgkmcnt(0)\ns_nop 7")
        n = 0
        for i in range(2):
            if vt:
                for u in range(5):
                    a = ACC + 16 * (u * 2 + i)
                    for h in range(2):
                        t = ET + 4 * (n % 4); n += 1
                        for e in range(4): k(f"v_cvt_pk_bf16_f32 v{t+e}, v{a+8*h+2*e}, v{a+8*h+2*e+1}")
                        k(f"buffer_store_dwordx4 {vr(t,4)}, v{224+u}, {ws}, s{76+i} offen offset:{640*h} {SC}")
            else:
                quad = lambda Q: ACC + 16 * ((Q >> 2) * 2 + i) + 4 * (Q & 3)
                for m in range(4):
                    for qs in ((0, 1), (2,), (3, 4)):
                        t = ET + 4 * (n % 4); n += 1
                        for x, Q in enumerate(qs):
                            a = quad(5 * m + Q)
                            for e in (0, 2): k(f"v_pk_mul_f32 {vr(a+e,2)}, {vr(a+e,2)}, s[42:43] op_sel_hi:[1,0]")
                            k(f"v_cvt_pk_bf16_f32 v{t+2*x}, v{a}, v{a+1}\nv_cvt_pk_bf16_f32 v{t+2*x+1}, v{a+2}, v{a+3}")
                        if len(qs) == 1:
                            k(f"buffer_store_dwordx2 {vr(t,2)}, v225, {ws}, s{76+i} offen offset:1024 {SC}\ns_add_u32 s{76+i}, s{76+i}, s64")
                        else:
                            k(f"buffer_store_dwordx4 {vr(t,4)}, v224, {ws}, s{76+i} offen {SC}")
                    if m < 3: k(f"s_add_u32 s{76+i}, s{76+i}, s64")
        k(f"s_branch {qd}")
    k.label(lg)
    k(f"s_mov_b32 s{SW}, s{P_GW}\ns_mov_b32 s{SW+1}, s{P_GW+1}\ns_mov_b32 s{SW+2}, {SZ['gw']}\ns_mov_b32 m0, {GLDS}\nv_lshlrev_b32 v3, 4, v0\nv_lshlrev_b32 v{WA}, 4, v2\nv_add_u32 v{WA}, {GLDS}, v{WA}")
    k(f"buffer_load_dwordx4 v3, {sr(SW,4)}, 0 offen lds\nbuffer_load_dwordx4 v3, {sr(SW,4)}, 0 offen offset:1024 lds")
    k(f"s_mov_b32 s{S_CNT}, 10\ns_mov_b32 s{S_SLOT}, 0\ns_waitcnt vmcnt(0) lgkmcnt(0)\ns_barrier")
    l = k.lab("gg"); k.label(l)
    for kk in range(4):
        k(f"ds_read_b128 {vr(16+12*kk,4)}, v{XA[kk]}\nds_read_b128 {vr(20+12*kk,4)}, v{XA[kk]} offset:4096\nds_read_b128 {vr(24+12*kk,4)}, v{WA} offset:{32*kk}")
    k(f"s_add_u32 s{S_SLOT}, s{S_SLOT}, 1\ns_cmp_eq_u32 s{S_SLOT}, 3\ns_cselect_b32 s{S_DELTA}, s70, s71\ns_cselect_b32 s{S_SLOT}, 0, s{S_SLOT}\ns_sub_u32 s{S_CNT}, s{S_CNT}, 1")
    nb = k.lab("nb")
    k(f"s_waitcnt lgkmcnt(0)\ns_cmp_eq_u32 s{S_CNT}, 0\ns_cbranch_scc1 {nb}\ns_barrier")
    k.label(nb)
    for kk in range(4):
        for i in range(2): k(f"v_mfma_f32_32x32x16_bf16 {vr(ACC+16*i,16)}, {vr(24+12*kk,4)}, {vr(16+12*kk+4*i,4)}, {vr(ACC+16*i,16)}")
        k(f"v_add_u32 v{XA[kk]}, s{S_DELTA}, v{XA[kk]}")
    k(f"v_add_u32 v{WA}, 128, v{WA}\ns_cmp_lg_u32 s{S_CNT}, 0\ns_cbranch_scc1 {l}")
    k(f"s_mov_b32 s32, {f32hex(-LOG2E)}\ns_lshl_b32 s28, s65, 7\ns_add_u32 s28, s28, {WS_G}\nv_lshlrev_b32 v3, 2, v1\ns_nop 7")
    for i in range(2):
        a = ACC + 16 * i
        k(f"v_mul_f32 v{a}, s32, v{a}\nv_exp_f32 v{a}, v{a}\ns_nop 0\nv_add_f32 v{a}, 1.0, v{a}\nv_rcp_f32 v{a}, v{a}\ns_nop 0\nbuffer_store_dword v{a}, v3, {ws}, s28 offen offset:{128*i} {SC}")
    k.label(qd)
    stamp(k, 4, 2)
    k("s_waitcnt vmcnt(0)")
    stamp(k, 5, 2)
    k("s_barrier")
    stamp(k, 6, 2)
    pre_epilogue(k)
    k("s_barrier")
    k.label(done)

def spare_wg(k):
    ws = sr(SWS, 4)
    k(f"s_lshl_b32 s22, s{TAB+1}, 3\ns_add_u32 s22, s22, s{S_WAVE}\nv_mov_b32 v12, 0\nv_mov_b32 v13, 1")
    k(f"s_lshl_b32 s24, s22, 9\ns_add_u32 s23, s24, {WS_FH}\ns_add_u32 s25, s24, {WS_FO}\ns_lshl_b32 s24, s22, 8\ns_add_u32 s24, s24, {WS_FQ}\nv_lshlrev_b32 v2, 7, v0\ns_mov_b64 exec, 15")
    k(f"buffer_store_dword v12, v2, {ws}, s23 offen sc1\nbuffer_store_dword v12, v2, {ws}, s25 offen sc1\ns_mov_b64 exec, 3\nbuffer_store_dword v12, v2, {ws}, s24 offen sc1\ns_mov_b64 exec, -1")
    k("s_waitcnt vmcnt(0) lgkmcnt(0)\ns_barrier")
    sk = k.lab("na")
    k(f"s_cmp_lg_u32 s{S_WAVE}, 0\ns_cbranch_scc1 {sk}\ns_mov_b64 exec, 1")
    k(f"global_atomic_add v3, v12, v13, {sr(P_DBG,2)} sc0 sc1\ns_waitcnt vmcnt(0)\nv_cmp_eq_u32 vcc, 7, v3\ns_nop 1\ns_cmp_eq_u64 vcc, 0\ns_cbranch_scc1 {sk}")
    k(f"global_store_dword v12, v13, {sr(P_DBG,2)} offset:128 sc1")
    k.label(sk)
    k("s_mov_b64 exec, -1")
    if OPT.get('spw', 1):
        k(f"s_mov_b32 s{SW}, s{P_WD}\ns_mov_b32 s{SW+1}, s{P_WD+1}\ns_mov_b32 s{SW+2}, {SZ['wd']}\ns_lshl_b32 s23, s22, 13")
        for n in range(5): k(f"buffer_load_dword v{DUMMY}, v2, {sr(SW,4)}, s23 offen\ns_add_u32 s23, s23, {64*8192}")
        k(f"s_mov_b32 s{SW}, s{P_WO}\ns_mov_b32 s{SW+1}, s{P_WO+1}\ns_mov_b32 s{SW+2}, {SZ['wo']}\ns_lshl_b32 s23, s22, 13")
        for n in range(2): k(f"buffer_load_dword v{DUMMY}, v2, {sr(SW,4)}, s23 offen\ns_add_u32 s23, s23, {64*8192}")
        k("s_waitcnt vmcnt(0)")
    wait_cleared(k)
```

```python
from fz_a import *
import fz_a

TS = 2608; CH = 8 * TS; RB = 32768
WOB = 98304
MB = RB + 8192
aK16, aK4, aV0, aV1, gL, IDX, GQ, GO = 4, 5, 6, 7, 8, 9, 10, 11
Q16 = [16, 20]; Q4 = [24, 26]
KS = [dict(K16=28, K4=32, V0=36, V1=40), dict(K16=44, K4=34, V0=48, V1=52)]
KT16, KT4 = 56, 60
DS = [56, 76]; DA = [96, 112, 128, 144, 160]; S = [176, 192, 208]; O = [224, 240]
HEAD, QT, KQ, GRP = 4, 5, 6, 7
M32, M20, ONES, K1 = 64, 66, 68, 69
KVB, DLDS, CNT, DSRC = 70, 72, 73, 74
SH0, SH1, SW0, SW2, UA, US, TB0, TB1 = 44, 46, 48, 50, 78, 79, 26, 27
WM0, WM2, WT0, WT2 = 12, 14, 36, 38
LD = "sc1"
ws = sr(SWS, 4)

def kv_dma(src):
    return [f"global_load_lds_dwordx4 v{gL}, {sr(src,2)} {LD}",
            f"global_load_lds_dwordx4 v{gL}, {sr(src,2)} offset:1024 {LD}",
            f"s_mov_b64 exec, {sr(M32,2)}\nglobal_load_lds_dwordx4 v{gL}, {sr(src,2)} offset:2048 {LD}\ns_mov_b64 exec, -1"]
def ptr(r): return f"s_add_u32 s{r}, s{r}, s{P_WS}\ns_addc_u32 s{r+1}, s{P_WS+1}, 0"
def adv(r, n): return f"s_add_u32 s{r}, s{r}, {n}\ns_addc_u32 s{r+1}, s{r+1}, 0"

def attn_early(k):
    k(f"""s_and_b32 s{HEAD}, s2, 7
    s_lshl_b32 s{HEAD}, s{HEAD}, 2
    s_lshr_b32 s23, s2, 6
    s_add_u32 s{HEAD}, s{HEAD}, s23
    s_bfe_u32 s{TB0}, s2, 0x30003
    s_lshl_b32 s{TB0}, s{TB0}, 3
    s_and_b32 s{KQ}, s{S_WAVE}, 3
    s_lshr_b32 s{GRP}, s{S_WAVE}, 2
    s_lshl_b32 s{QT}, s{KQ}, 1
    s_add_u32 s{QT}, s{QT}, s{TB0}
    s_lshr_b32 s23, s{HEAD}, 3
    s_lshl_b32 s23, s23, 1
    s_add_u32 s{TB0}, s{TB0}, s23
    s_and_b32 s23, s{HEAD}, 1
    s_add_u32 s{TB0}, s{TB0}, s23
    s_xor_b32 s{TB1}, s{TB0}, 1
    s_bfe_u32 s{US}, s{HEAD}, 0x20001
    s_mul_i32 s{US}, s{US}, 5
    s_mul_i32 s23, s23, 3
    s_add_u32 s{UA}, s{US}, s23
    s_add_u32 s{US}, s{US}, 2
    s_mul_i32 s{KVB}, s{HEAD}, {64*2560}
    s_add_u32 s{KVB}, s{KVB}, {WS_KV}
    s_lshl_b32 s23, s{GRP}, 5
    s_add_u32 s23, s23, s{KQ}
    s_mul_i32 s{DSRC}, s23, 2560
    s_add_u32 s{DSRC}, s{DSRC}, s{KVB}
    {ptr(DSRC)}
    s_lshl_b32 s28, s{HEAD}, 6
    s_add_u32 s28, s28, s{QT}
    s_mul_i32 s28, s28, 1280
    s_add_u32 s28, s28, {WS_QF}
    s_mul_i32 s{DLDS}, s{S_WAVE}, {TS}
    s_add_u32 s{DLDS}, s{DLDS}, {RB}
    s_lshr_b32 s23, s{KQ}, 1
    s_and_b32 s22, s{KQ}, 1
    s_lshl_b32 s29, s23, 5
    s_add_u32 s29, s29, s22
    s_add_u32 s29, s29, 30
    s_mul_i32 s29, s29, 2560
    s_add_u32 s76, s29, s{KVB}
    {ptr(76)}
    s_lshl_b32 s30, s23, 2
    s_add_u32 s30, s30, s22
    s_mul_i32 s30, s30, {TS}
    s_add_u32 s30, s30, {RB + 2*CH}
    s_mov_b32 s{M32}, -1
    s_mov_b32 s{M32+1}, 0
    s_mov_b32 s{ONES}, 0x3f803f80
    s_mov_b32 s{K1}, 0x00003f80
    v_and_b32 v1, 31, v0
    v_lshrrev_b32 v2, 5, v0
    v_lshlrev_b32 v{gL}, 4, v0""")
    k(f"v_mul_u32_u24 v3, {TS}, v0\nv_mov_b32 v4, s{ONES}\nv_mov_b32 v5, s{ONES}\nv_mov_b32 v6, s{ONES}\nv_mov_b32 v7, s{ONES}\nv_mov_b32 v10, s{ONES}\nv_mov_b32 v11, s{K1}\nv_mov_b32 v12, 0\nv_mov_b32 v13, 0")
    for q in range(2): k(f"v_mov_b32 v{Q4[q]}, 0\nv_mov_b32 v{Q4[q]+1}, 0")
    k(f"s_mov_b64 exec, 0xffffff\nds_write_b128 v3, v[4:7] offset:{RB+2560}\nds_write_b128 v3, v[10:13] offset:{RB+2576}\nds_write_b128 v3, {vr(Q4[0],4)} offset:{RB+2592}\ns_mov_b64 exec, -1")
    k(f"""s_mul_i32 s23, s{GRP}, {4*TS}
    s_add_u32 s23, s23, {RB}
    s_add_u32 s22, s23, 2576
    v_add_u32 v{aK16}, s23, v{gL}
    s_add_u32 s31, s23, 1024
    v_lshl_add_u32 v{aK4}, v1, 3, s31
    v_cmp_eq_u32 vcc, 0, v2
    v_mov_b32 v3, s22
    s_add_u32 s31, s23, 1280
    v_and_b32 v12, 3, v1
    v_cndmask_b32 v{aK4}, v3, v{aK4}, vcc
    v_lshl_add_u32 v12, v12, 4, s31
    v_lshl_add_u32 v12, v2, 6, v12
    v_lshrrev_b32 v13, 2, v1
    v_lshl_add_u32 v{aV0}, v13, 7, v12
    v_cmp_lt_u32 vcc, 20, v1
    v_subrev_u32 v12, 16, v3
    v_add_u32 v13, 16, v3
    v_cndmask_b32 v3, v12, v13, vcc
    v_cmp_gt_u32 vcc, 20, v1
    v_add_u32 v{aV1}, 640, v{aV0}
    v_mov_b32 v{IDX}, 0xdddddddd
    v_cndmask_b32 v{aV0}, v3, v{aV0}, vcc
    v_cndmask_b32 v{aV1}, v3, v{aV1}, vcc
    v_lshlrev_b32 v12, 3, v0
    v_mov_b32 v13, 0""")
    np_ = k.lab("np")
    k(f"s_cmp_lg_u32 s{S_WAVE}, 4\ns_cbranch_scc1 {np_}")
    k(f"""s_lshr_b32 s23, s{HEAD}, 3
    s_lshl_b32 s23, s23, 3
    s_bfe_u32 s22, s2, 0x30003
    v_lshrrev_b32 v3, 3, v0
    v_lshlrev_b32 v3, 5, v3
    v_and_b32 v13, 7, v0
    v_add3_u32 v13, v13, v3, 32
    v_add_u32 v13, s23, v13
    s_add_u32 s23, s23, s22
    s_add_u32 s22, s22, 96
    v_writelane_b32 v13, s23, 16
    v_writelane_b32 v13, s22, 17
    s_mov_b32 s23, {WS_FQ}
    v_lshlrev_b32 v13, 7, v13""")
    poll(k, f"buffer_load_dword v3, v13, {ws}, s23 offen sc1", 0x3ffff, OPT.get('slp', 2))
    k.label(np_)
    stamp(k, 8, 2)
    k("s_barrier")
    stamp(k, 9, 2)
    nt = k.lab("nt")
    k(f"s_cmp_eq_u32 s{GRP}, 0\ns_cbranch_scc1 {nt}\ns_mov_b32 m0, s30\ns_nop 0\n" + "\n".join(kv_dma(76)))
    k.label(nt)
    for q in range(2): k(f"buffer_load_dwordx4 {vr(Q16[q],4)}, v{gL}, {ws}, s28 offen offset:{1280*q} {LD}")
    k(f"s_mov_b64 exec, {sr(M32,2)}")
    for q in range(2): k(f"buffer_load_dwordx2 {vr(Q4[q],2)}, v12, {ws}, s28 offen offset:{1280*q+1024} {LD}")
    k(f"s_mov_b64 exec, -1\ns_mov_b32 m0, s{DLDS}\ns_nop 0\n" + "\n".join(kv_dma(DSRC)))
    k(f"s_add_u32 m0, s{DLDS}, {CH}\n{adv(DSRC, 4*2560)}\n" + "\n".join(kv_dma(DSRC)))

def attn_early2(k):
    sk = k.lab("a2")
    k(f"s_sub_u32 s23, s{TAB}, 1\ns_cmp_lt_u32 s23, 2\ns_cselect_b32 s23, 5, 63\ns_cmp_lg_u32 s{S_WAVE}, s23\ns_cbranch_scc1 {sk}")
    k(f"v_mov_b32 v12, 0\nv_mov_b32 v13, 1\ns_mov_b64 exec, 1\nglobal_atomic_add v{DUMMY}, v12, v13, {sr(P_DBG,2)} offset:4 sc0 sc1\ns_mov_b64 exec, -1\ns_waitcnt vmcnt(11)\ns_branch {sk}_b")
    k.label(sk)
    k(f"v_mov_b32 v{DUMMY}, 0\ns_waitcnt vmcnt(10)")
    k.label(sk + "_b")
    k("s_barrier")

def qk(k, sb, k16, k4, q):
    k(f"v_mfma_f32_32x32x16_bf16 {vr(sb,16)}, {vr(k16,4)}, {vr(Q16[q],4)}, 0")
    k(f"v_mfma_f32_32x32x8_bf16 {vr(sb,16)}, {vr(k4,2)}, {vr(Q4[q],2)}, {vr(sb,16)}")
def rowmax(k, sb, dst, first):
    if first:
        k(f"v_max3_f32 v{dst}, v{sb}, v{sb+1}, v{sb+2}")
        rest = list(range(3, 16)) + [0]
    else:
        rest = list(range(16))
    for i in range(0, len(rest), 2):
        k(f"v_max3_f32 v{dst}, v{dst}, v{sb+rest[i]}, v{sb+rest[i+1]}")
def setpad(k, m, q, a, b, c):
    k(f"v_mov_b32 v{a}, v{m}\ns_nop 1\nv_permlane32_swap_b32 v{m}, v{a}\ns_nop 1\nv_max_f32 v{m}, v{m}, v{a}")
    k(f"""v_xor_b32 v{m}, 0x80000000, v{m}
    v_and_b32 v{a}, 0xffff0000, v{m}
    v_sub_f32 v{b}, v{m}, v{a}
    v_and_b32 v{c}, 0xffff0000, v{b}
    v_sub_f32 v{b}, v{b}, v{c}
    v_lshrrev_b32 v{a}, 16, v{a}
    v_or_b32 v{a}, v{a}, v{c}
    v_lshrrev_b32 v{b}, 16, v{b}""")
    k(f"v_cndmask_b32 v{Q4[q]}, v{a}, v{Q4[q]}, vcc\nv_cndmask_b32 v{Q4[q]+1}, v{b}, v{Q4[q]+1}, vcc")

def kv_reads(st, off):
    return [f"ds_read_b128 {vr(st['V1'],4)}, v{aV1} offset:{off}", f"ds_read_b128 {vr(st['K16'],4)}, v{aK16} offset:{off}",
            f"ds_read_b64 {vr(st['K4'],2)}, v{aK4} offset:{off}", f"ds_read_b128 {vr(st['V0'],4)}, v{aV0} offset:{off}"]

def phase(p, extra_m=(), fill=None):
    t = p >> 1; q = p & 1
    cur, nxt = KS[t & 1], KS[(t + 1) & 1]
    sb = S[p % 3]; sprev = S[(p - 1) % 3]
    v1 = nxt['V1'] if q == 0 else cur['V1']
    pv2 = [f"v_smfmac_f32_32x32x32_bf16 {vr(O[1-q],16)}, {vr(v1,4)}, {vr(sprev+8,8)}, v{IDX}"]
    qk1 = [f"v_mfma_f32_32x32x16_bf16 {vr(sprev,16)}, {vr(cur['K16'],4)}, {vr(Q16[q],4)}, 0"]
    qk2 = [f"v_mfma_f32_32x32x8_bf16 {vr(sprev,16)}, {vr(cur['K4'],2)}, {vr(Q4[q],2)}, {vr(sprev,16)}"]
    pv1 = [f"v_smfmac_f32_32x32x32_bf16 {vr(O[q],16)}, {vr(cur['V0'],4)}, {vr(sb,8)}, v{IDX}"]
    if p >= 62: qk1 = qk2 = []
    if p == 0: pv2 = []
    D = kv_reads(nxt, ((t >> 2) % 3) * CH + (t & 3) * TS) if q == 0 and t < 31 else []
    if t == 30: D = [D[0], D[3]] if D else D
    n = len(extra_m)
    if n == 0: ms, gaps = [pv2, qk1, qk2, pv1], [2, 4, 4, 4, 2]
    elif n == 1: ms, gaps = [pv2, qk1, extra_m[0], qk2, pv1], [2, 3, 3, 3, 4, 1]
    else: ms, gaps = [pv2, extra_m[0], qk1, extra_m[1], qk2, pv1], [2, 2, 3, 3, 2, 3, 1]
    Q.extend(fill or [])
    out = []; e = 0
    for i, g in enumerate(gaps):
        out += [f"v_exp_f32 v{sb+j}, v{sb+j}" for j in range(e, e + g)]; e += g
        if i < len(ms):
            out += [x for x in ms[i] if not (isinstance(x, tuple) and x[0] == 'q')]
            Q.extend([x[1]] for x in ms[i] if isinstance(x, tuple) and x[0] == 'q')
            if D: out.append(D.pop(0))
            for _ in range(len(Q) if p == 63 and i == len(ms) - 1 else min(len(Q), 1)):
                f = Q.pop(0); out += f if isinstance(f, list) else [f]
    return out
Q = []

def resolve(items, pro):
    seq = list(pro); out = []
    for it in items:
        if not isinstance(it, tuple): out.append(it)
        elif it[0] == 'vm': out.append(it[2]); seq.append(it[1])
        else:
            hit = [idx for idx, t in enumerate(seq) if t in it[1]]
            n = len(seq) - 1 - max(hit)
            out.append(f"s_waitcnt vmcnt({min(n, 63)}){it[2]}")
    return out

def wo_src(i):
    s_, u = i // 3, i % 3
    if s_ < 4: return (WM2 if u == 2 else WM0), s_ * 20480 + (0 if u == 2 else 1024 * u)
    return (WT2 if u == 2 else WT0), (0 if u == 2 else 1024 * u)
def wo_lds(i):
    if i < 4: return 0, 4096, 1024 * i
    if i < 12: return WOB, 8192, 1024 * (i - 4)
    if i < 14: return RB + 2 * CH, 2048, 1024 * (i - 12)
    return RB, 1024, 0

def attn_main(k, end):
    stamp(k, 3)
    if OPT.get('stamp'): k("s_waitcnt lgkmcnt(0)")
    k(f"s_mul_i32 s23, s{GRP}, {4*TS}\nv_subrev_u32 v12, s23, v{aK16}\nv_subrev_u32 v13, s23, v{aK4}")
    k(f"ds_read_b128 {vr(KS[1]['K16'],4)}, v12 offset:{2*CH}\nds_read_b64 {vr(KS[1]['K4'],2)}, v13 offset:{2*CH}")
    k(f"ds_read_b128 {vr(KT16,4)}, v{aK16} offset:{2*CH}\nds_read_b64 {vr(KT4,2)}, v{aK4} offset:{2*CH}")
    k("\n".join(kv_reads(KS[0], 2 * CH + TS)))
    k(f"v_mov_b32 v12, 0\nv_mov_b32 v13, 0\nv_cmp_eq_u32 vcc, 0, v2")
    zz = [f"v_mfma_f32_32x32x8_bf16 {vr(b,16)}, v[12:13], v[12:13], 0" for b in O]
    k(f"""s_mul_i32 s23, s{KQ}, 14
    s_mul_i32 s22, s{KQ}, 13
    s_add_u32 s22, s22, 56
    s_cmp_eq_u32 s{GRP}, 0
    s_cselect_b32 s23, s23, s22
    s_waitcnt vmcnt(6) lgkmcnt(6)""")
    qk(k, S[0], KS[1]['K16'], KS[1]['K4'], 0)
    qk(k, S[1], KS[1]['K16'], KS[1]['K4'], 1)
    k(f"""s_mul_i32 s{SH0}, s{TB0}, 108
    s_add_u32 s{SH0}, s{SH0}, s23
    s_lshl_b32 s{SH0}, s{SH0}, 10
    s_add_u32 s{SH0}, s{SH0}, {WS_HF}
    {ptr(SH0)}
    s_mul_i32 s{SH1}, s{TB1}, 108
    s_add_u32 s{SH1}, s{SH1}, s23
    s_lshl_b32 s{SH1}, s{SH1}, 10
    s_add_u32 s{SH1}, s{SH1}, {WS_HF}
    {ptr(SH1)}""")
    k(zz[0] + "\ns_nop 0")
    rowmax(k, S[0], S[2], True)
    k(zz[1])
    rowmax(k, S[1], S[2]+1, True)
    setpad(k, S[2], 0, S[2]+2, S[2]+3, S[2]+4)
    setpad(k, S[2]+1, 1, S[2]+2, S[2]+3, S[2]+4)
    k("s_waitcnt lgkmcnt(0)\ns_nop 0")
    qk(k, S[0], KT16, KT4, 0)
    qk(k, S[1], KT16, KT4, 1)
    k(f"""s_mul_i32 s23, s23, 20480
    s_add_u32 s23, s23, {WS_WT}
    s_lshl_b32 s22, s{UA}, 10
    s_add_u32 s{SW0}, s23, s22
    s_lshl_b32 s21, s{US}, 10
    s_add_u32 s{SW2}, s23, s21
    s_mul_i32 s23, s{S_WAVE}, {4*20480}
    s_add_u32 s23, s23, {WS_WT + 108*20480}
    s_add_u32 s{WM0}, s23, s22
    s_add_u32 s{WM2}, s23, s21
    s_mul_i32 s23, s{S_WAVE}, 20480
    s_add_u32 s23, s23, {WS_WT + 140*20480}
    s_add_u32 s{WT0}, s23, s22
    s_add_u32 s{WT2}, s23, s21""")
    for r in (SW0, SW2, WM0, WM2, WT0, WT2): k(ptr(r))
    k(f"""s_lshl_b32 s32, s{TAB+2}, 5
    s_add_u32 s32, s32, s{TAB+1}
    s_lshl_b32 s32, s32, 7
    s_add_u32 s32, s32, {WS_FH}
    s_lshr_b32 s33, s{TB0}, 3
    s_lshl_b32 s33, s33, 12
    s_add_u32 s33, s33, {WS_FH}
    s_add_u32 s42, s{TAB}, s{S_WAVE}
    s_add_u32 s34, s{QT}, s{GRP}
    s_lshl_b32 s34, s34, 7
    s_add_u32 s34, s34, {WS_G}
    s_cmp_eq_u32 s{GRP}, 0
    s_cselect_b32 s35, s{TB0}, s{TB1}
    s_lshl_b32 s35, s35, 7
    s_add_u32 s35, s35, {WS_G}""")
    k(f"s_lshl_b32 s24, s{S_WAVE}, 10\nv_lshlrev_b32 v14, 7, v0\nv_lshlrev_b32 v3, 2, v1")
    k(f"s_add_u32 s25, s{TAB}, s{GRP}\nv_mov_b32 v13, 1\ns_waitcnt vmcnt(3)")
    stamp(k, 4)
    if OPT.get('stamp'): k("s_waitcnt lgkmcnt(0)")
    P0, P1 = OPT.get('p0', 16), OPT.get('p1', 64)
    NDEF = OPT.get('ndef', 2)
    def loads(n):
        d = DS[n & 1]; L = []
        def vm(r, so, off, step):
            t = f"global_load_dwordx4 {vr(r,4)}, v{gL}, {sr(so,2)} offset:{off} {LD}"
            if n == 13:
                sk = k.lab("sk"); t = f"s_cbranch_scc1 {sk}\n{t}\n{sk}:"
                t = f"s_cmp_eq_u32 s{GRP}, 1\n" + t
            elif step: t += "\n" + adv(so, step)
            L.append(('vm', f"d{n}", t))
        vm(d, SH0, 0, 1024); vm(d + 8, SW0, 0, 0); vm(d + 12, SW0, 1024, 20480); vm(d + 16, SW2, 0, 20480); vm(d + 4, SH1, 0, 1024)
        return L
    mf = []
    for n in range(14):
        d = DS[n & 1]
        for u, (wr_, hr) in enumerate(((8, 0), (12, 0), (16, 0), (8, 4), (12, 4))):
            it = [f"v_mfma_f32_32x32x16_bf16 {vr(DA[u],16)}, {vr(d+wr_,4)}, {vr(d+hr,4)}, {vr(DA[u],16) if n else 0}"]
            if u == 0:
                it = [('wait', [f"d{n}"], "")] + it
                if n < 13: it += [('q', x) for x in loads(n + 1)]
            mf.append(it)
    late = []
    if NDEF:
        late = mf[-5*NDEF:]; mf = mf[:-5*NDEF]
        if NDEF == 2:
            late[0] = late[0][:2]; mf[-1] = mf[-1] + [('q', x) for x in loads(13)]
        late = [[x for x in it if not isinstance(x, tuple)] for it in late]
    if OPT.get('nodown'): mf = []
    if OPT.get('nodl'): mf = [[x for x in it if not isinstance(x, tuple)] for it in mf]
    if OPT.get('nodm'): mf = [[x for x in it if isinstance(x, tuple) or 'mfma' not in x] for it in mf]
    if OPT.get('nodw'): mf = [[x for x in it if not (isinstance(x, tuple) and x[0] == 'wait')] for it in mf]
    def wo_dma(i):
        b, off = wo_src(i); lb, st_, lo = wo_lds(i)
        return [('vm', 'wo', f"s_mul_i32 s23, s24, {st_ // 1024}\ns_add_u32 m0, s23, {lb + lo}\ns_add_u32 s22, s{b}, {off}\ns_addc_u32 s23, s{b+1}, 0\nglobal_load_lds_dwordx4 v{gL}, s[22:23] {LD}")]
    items = [".p2align 6"]
    mi = 0
    pl, ok = k.lab("ph"), k.lab("ok")
    for p in range(64):
        c, pp = p >> 3, p & 7
        if p == P0:
            if OPT.get('stamp') == 1: items.append(f"{'s_memrealtime' if OPT.get('rt') else 's_memtime'} s[90:91]\ns_waitcnt lgkmcnt(0)")
            items += [('wait', ['poll'], ""), f"s_mov_b64 exec, 0x7ffff\ns_mov_b32 s21, {SPIN}\n{pl}:\nv_cmp_ne_u32 vcc, 1, v12\ns_nop 1\ns_cmp_eq_u64 vcc, 0\ns_cbranch_scc1 {ok}\ns_sleep 4\n"
                      f"buffer_load_dword v12, v14, {ws}, s33 offen sc1\ns_sub_u32 s21, s21, 1\ns_waitcnt vmcnt(0)\ns_cbranch_scc0 {pl}\n{ok}:\ns_mov_b64 exec, -1"]
            Q.extend([x] for x in loads(0))
        if pp == 0:
            if c == 0: items.append("s_waitcnt lgkmcnt(0)")
            elif c == 1: items.append("s_waitcnt vmcnt(0) lgkmcnt(0)")
            else: items.append(('wait', [f"kv{c}"], " lgkmcnt(0)"))
            items.append("s_barrier")
            if c == 1:
                nf = k.lab("nf")
                items += [f"s_cmp_lg_u32 s42, 0\ns_cbranch_scc1 {nf}\ns_mov_b64 exec, 1\nbuffer_store_dword v13, v14, {ws}, s32 offen sc1\ns_mov_b64 exec, -1\n{nf}:"]
                nf = k.lab("nf")
                items += [f"s_cmp_lg_u32 s{S_WAVE}, 5\ns_cbranch_scc1 {nf}\nv_readfirstlane_b32 s23, v{DUMMY}\ns_mov_b32 s22, {WS_FH + 18*128}\ns_cmp_lg_u32 s23, 95\ns_cbranch_scc1 {nf}\n"
                          f"v_lshlrev_b32 v12, 12, v0\ns_mov_b64 exec, 0xff\nbuffer_store_dword v13, v12, {ws}, s22 offen sc1\ns_mov_b64 exec, -1\n{nf}:"]
        elif pp % 2 == 0: items.append("s_waitcnt lgkmcnt(0)")
        if pp % 2 == 0 and not OPT.get('nopr'): items.append(f"s_setprio {3 - pp//2}")
        fill = []
        if pp == 1 and c < 6:
            d = kv_dma(DSRC)
            fill = [[('vm', f"kv{c+2}", f"s_add_u32 m0, s{DLDS}, {((c+2) % 3)*CH}\n{adv(DSRC, 4*2560)}\n" + d[0])], [('vm', f"kv{c+2}", d[1])], [('vm', f"kv{c+2}", d[2])]]
        if pp == 1 and c == 6: fill = [wo_dma(12), wo_dma(13)]
        if pp == 1 and c == 7: fill = [wo_dma(14)]
        if 2 <= c < 6 and pp in (3, 5, 7) and not OPT.get('nowo'): fill.append(wo_dma(3 * (c - 2) + (pp - 3) // 2))
        h0 = OPT.get('h0', 1)
        if h0 <= p < h0 + 4:
            i_ = p - h0
            for j_ in range(3):
                nh = k.lab("nh")
                fill.append(f"s_cmp_lg_u32 s25, 0\ns_cbranch_scc1 {nh}\nbuffer_store_dwordx4 {vr(64+16*j_+4*i_,4)}, v{gL}, {ws}, s43 offen offset:{1024*j_} sc1"
                            + (f"\ns_add_u32 s43, s43, {108*1024}" if j_ == 2 else "") + f"\n{nh}:")
        if p == P0 - 3: fill.append([('vm', 'poll', f"s_mov_b64 exec, 0x7ffff\nbuffer_load_dword v12, v14, {ws}, s33 offen sc1\ns_mov_b64 exec, -1")])
        if p == 9: fill.append([('vm', 'g', f"buffer_load_dword v{GQ}, v3, {ws}, s34 offen {LD}"), ('vm', 'g', f"buffer_load_dword v{GO}, v3, {ws}, s35 offen {LD}")])
        nm = 0
        if P0 + 2 <= p < P1:
            a, b = p - P0 - 2, P1 - P0 - 2
            nm = (len(mf) * (a + 1)) // b - (len(mf) * a) // b
        items += phase(p, mf[mi:mi + nm], fill); mi += nm
    assert mi == len(mf)
    k("\n".join(resolve(items, [])))
    stamp(k, 6)
    k(f"s_setprio 0\ns_mul_i32 s28, s{S_WAVE}, 3072\ns_xor_b32 s29, s{S_WAVE}, 4\ns_mul_i32 s29, s29, 3072")
    k(f"v_smfmac_f32_32x32x32_bf16 {vr(O[1],16)}, {vr(KS[1]['V1'],4)}, {vr(S[63 % 3]+8,8)}, v{IDX}")
    k(f"v_add_u32 v12, s28, v{gL}\nv_add_u32 v13, s29, v{gL}")
    k("s_barrier")
    h1 = k.lab("h1"); hj = k.lab("hj")
    k(f"s_cmp_eq_u32 s{GRP}, 1\ns_nop 6\ns_cbranch_scc1 {h1}")
    for i in range(3): k(f"ds_write_b128 v12, {vr(O[1]+4*i,4)} offset:{MB+1024*i}")
    k(f"s_branch {hj}")
    k.label(h1)
    for i in range(3): k(f"ds_write_b128 v12, {vr(O[0]+4*i,4)} offset:{MB+1024*i}")
    k("s_nop 1")
    for i in range(0, 12, 2): k(f"v_pk_mov_b32 {vr(O[0]+i,2)}, {vr(O[1]+i,2)}, {vr(O[1]+i,2)} op_sel:[0,1]")
    k.label(hj)
    k(f"s_add_u32 s{QT}, s{QT}, s{GRP}\ns_mul_i32 s28, s{QT}, 40960\ns_add_u32 s28, s28, {WS_OF}\ns_lshl_b32 s29, s{HEAD}, 8\ns_add_u32 s29, s29, s28\ns_add_u32 s29, s29, 32768\ns_lshl_b32 s23, s{HEAD}, 10\ns_add_u32 s28, s28, s23")
    k("s_mov_b32 s30, 0x5f800000\nv_lshlrev_b32 v3, 3, v0\ns_waitcnt lgkmcnt(0)\ns_barrier")
    OO = O[0]; X = S[0]
    for i in range(3): k(f"ds_read_b128 {vr(X+4*i,4)}, v13 offset:{MB+1024*i}")
    k("s_waitcnt vmcnt(0) lgkmcnt(0)")
    for i in range(0, 12, 2): k(f"v_pk_add_f32 {vr(OO+i,2)}, {vr(OO+i,2)}, {vr(X+i,2)}")
    norm = k.lab("norm"); slow = k.lab("slow")
    def getl():
        k(f"v_mov_b32 v12, v{OO+8}\nv_mov_b32 v13, v{OO+8}\ns_nop 1\nv_permlane32_swap_b32 v12, v13\ns_nop 1")
    getl()
    if OPT.get('slow'): k(f"s_branch {slow}")
    k(f"v_cmp_nle_f32 vcc, v13, s30\ns_nop 1\ns_cmp_lg_u64 vcc, 0\ns_cbranch_scc1 {slow}")
    k.label(norm)
    k(f"v_rcp_f32 v12, v13\ns_nop 0\nv_mul_f32 v12, v12, v{GQ}")
    for i in range(0, 12, 2): k(f"v_pk_mul_f32 {vr(OO+i,2)}, {vr(OO+i,2)}, v[12:13] op_sel_hi:[1,0]")
    for i in range(6): k(f"v_cvt_pk_bf16_f32 v{X+i}, v{OO+2*i}, v{OO+2*i+1}")
    k(f"buffer_store_dwordx4 {vr(X,4)}, v{gL}, {ws}, s28 offen sc1")
    k(f"s_mov_b64 exec, {sr(M32,2)}\nbuffer_store_dwordx2 {vr(X+4,2)}, v3, {ws}, s29 offen sc1\ns_mov_b64 exec, -1")
    stamp(k, 7)
    out_proj(k, late)
    if OPT.get('stamp'): stamps_out(k, 11)
    k.label(end)
    k("s_endpgm")
    k.label(slow)
    st = KS[0]; T1 = 14
    sq = k.lab("sq")
    k(f"s_cmp_eq_u32 s{GRP}, 0\ns_cbranch_scc1 {sq}")
    for i in range(4): k(f"v_mov_b32 v{Q16[0]+i}, v{Q16[1]+i}")
    k(f"v_mov_b32 v{Q4[0]}, v{Q4[1]}\nv_mov_b32 v{Q4[0]+1}, v{Q4[1]+1}")
    k.label(sq)
    k(f"s_mov_b32 s{M20}, 0x000fffff\ns_mov_b32 s{M20+1}, 0x000fffff\nv_and_b32 v12, 3, v1\nv_lshlrev_b32 v12, 4, v12\nv_lshl_add_u32 v12, v2, 6, v12\nv_lshrrev_b32 v{T1}, 2, v1\nv_lshl_add_u32 v{T1}, v{T1}, 7, v12")
    k(f"v_cmp_eq_u32 vcc, 0, v2\nv_mov_b32 v12, 0\ns_nop 1\nv_cndmask_b32 v{Q4[0]}, v12, v{Q4[0]}, vcc\nv_cndmask_b32 v{Q4[0]+1}, v12, v{Q4[0]+1}, vcc")
    k(f"v_mov_b32 v{st['K4']}, s{ONES}\nv_mov_b32 v{st['K4']+1}, s{K1}")
    for i in range(4): k(f"v_mov_b32 v{st['V0']+i}, s{ONES}\nv_mov_b32 v{st['V1']+i}, s{ONES}")
    k(f"v_mov_b32 v{S[2]}, 0xff800000\ns_mov_b32 s{CNT}, 0")
    def pk(dst, skew):
        k(f"s_sub_u32 s{dst}, s{CNT}, {skew}\ns_and_b32 s{dst}, s{dst}, 31\ns_and_b32 s23, s{CNT}, 32\ns_or_b32 s{dst}, s{dst}, s23\ns_mul_i32 s{dst}, s{dst}, 2560\ns_add_u32 s{dst}, s{dst}, s{KVB}")
    def ldk():
        pk(22, 2)
        k(f"buffer_load_dwordx4 {vr(st['K16'],4)}, v{gL}, {ws}, s22 offen {LD}")
        k(f"s_mov_b64 exec, {sr(M32,2)}\nbuffer_load_dwordx2 {vr(st['K4'],2)}, v3, {ws}, s22 offen offset:1024 {LD}\ns_mov_b64 exec, -1")
    l1 = k.lab("p1"); k.label(l1)
    ldk()
    k("s_waitcnt vmcnt(0)")
    qk(k, S[0], st['K16'], st['K4'], 0)
    k("s_nop 11")
    rowmax(k, S[0], S[2], False)
    k(f"s_add_u32 s{CNT}, s{CNT}, 1\ns_cmp_lg_u32 s{CNT}, 64\ns_cbranch_scc1 {l1}")
    setpad(k, S[2], 0, S[2]+2, S[2]+3, S[2]+4)
    for i in range(16): k(f"v_mov_b32 v{OO+i}, 0")
    k(f"s_mov_b32 s{CNT}, 0")
    l2 = k.lab("p2"); k.label(l2)
    ldk()
    pk(31, 1)
    k(f"s_mov_b64 exec, {sr(M20,2)}")
    k(f"buffer_load_dwordx4 {vr(st['V0'],4)}, v{T1}, {ws}, s31 offen offset:1280 {LD}")
    k(f"buffer_load_dwordx4 {vr(st['V1'],4)}, v{T1}, {ws}, s31 offen offset:1920 {LD}")
    k("s_mov_b64 exec, -1\ns_waitcnt vmcnt(0)")
    qk(k, S[0], st['K16'], st['K4'], 0)
    k("s_nop 11")
    for i in range(16): k(f"v_exp_f32 v{S[0]+i}, v{S[0]+i}")
    k("s_nop 1")
    k(f"v_smfmac_f32_32x32x32_bf16 {vr(OO,16)}, {vr(st['V0'],4)}, {vr(S[0],8)}, v{IDX}")
    k(f"v_smfmac_f32_32x32x32_bf16 {vr(OO,16)}, {vr(st['V1'],4)}, {vr(S[0]+8,8)}, v{IDX}")
    k(f"s_add_u32 s{CNT}, s{CNT}, 1\ns_cmp_lg_u32 s{CNT}, 64\ns_cbranch_scc1 {l2}")
    k("s_nop 11")
    getl()
    k(f"s_branch {norm}")

def out_proj(k, late):
    OFR = 16
    WR = [56 + 4 * i for i in range(10)] + [176 + 4 * i for i in range(20)]
    k(f"s_bfe_u32 s23, s2, 0x30003\ns_lshl_b32 s23, s23, 5\ns_lshl_b32 s31, s23, 7\ns_add_u32 s31, s31, {WS_FO}\ns_add_u32 s23, s23, s{HEAD}\ns_lshl_b32 s30, s23, 7\ns_add_u32 s30, s30, {WS_FO}")
    k(f"v_mov_b32 v13, 1\nv_lshlrev_b32 v14, 7, v1")
    for n, (b, st_) in enumerate(((0, 4096), (WOB, 8192), (RB + 2 * CH, 2048), (RB, 1024))):
        k(f"s_mul_i32 s23, s{KQ}, {2*st_}\ns_add_u32 s23, s23, {b}\nv_add_u32 v{4+n}, s23, v{gL}")
    k(f"s_cmp_eq_u32 s{GRP}, 0\ns_cselect_b32 s{TB0}, s{TB0}, s{TB1}")
    for n, it in enumerate(late):
        if n == len(late) - 5 and late: sk = k.lab("sk"); k(f"s_cmp_eq_u32 s{GRP}, 1\ns_cbranch_scc1 {sk}")
        k("\n".join(it))
    if late: k.label(sk)
    k("s_waitcnt vmcnt(0)\ns_barrier")
    nf = k.lab("nf")
    k(f"s_cmp_lg_u32 s{S_WAVE}, 0\ns_cbranch_scc1 {nf}\ns_mov_b64 exec, 1\nbuffer_store_dword v13, v14, {ws}, s30 offen sc1\ns_mov_b64 exec, -1")
    k.label(nf)
    stamp(k, 8)
    k(f"s_mul_i32 s28, s{TB0}, 40960\ns_add_u32 s28, s28, {WS_OF}\ns_lshl_b32 s23, s{KQ}, 11\ns_add_u32 s29, s28, s23\ns_add_u32 s29, s29, 32768\ns_lshl_b32 s23, s{KQ}, 13\ns_add_u32 s28, s28, s23\ns_add_u32 s33, s28, 4096")
    k(f"s_mov_b32 s{SX}, s{P_OUT}\ns_mov_b32 s{SX+1}, s{P_OUT+1}")
    g1, fin = k.lab("o1"), k.lab("of")
    k(f"s_cmp_eq_u32 s{GRP}, 1\ns_cbranch_scc1 {g1}")
    for g in range(2):
        if g: k.label(g1)
        nu = 3 - g
        keep = DA[:3] if g == 0 else DA[3:]; give = DA[3:] if g == 0 else DA[:3]
        wreg = {}; n = 0
        for e in range(2):
            for s_ in range(5):
                for u in range(nu):
                    i = 3 * s_ + u
                    lb, st_, lo = wo_lds(i)
                    ar = {0: 4, WOB: 5, RB + 2 * CH: 6, RB: 7}[lb]
                    wreg[e, s_, u] = WR[n]
                    k(f"ds_read_b128 {vr(WR[n],4)}, v{ar} offset:{e*st_ + lo}"); n += 1
                    if n % 8 == 0: k("s_waitcnt lgkmcnt(4)")
        k(f"s_mul_i32 s23, s{S_WAVE}, 12288\nv_add_u32 v4, s23, v{gL}\ns_xor_b32 s23, s{S_WAVE}, 4\ns_mul_i32 s23, s23, 12288\nv_add_u32 v5, s23, v{gL}")
        k(f"v_sub_f32 v12, 1.0, v{GO}\ns_waitcnt lgkmcnt(0)\ns_barrier")
        for u, a in enumerate(give):
            for q in range(4): k(f"ds_write_b128 v4, {vr(a+4*q,4)} offset:{4096*u+1024*q}")
        k(f"v_lshlrev_b32 v3, 3, v1\nv_lshl_add_u32 v3, v2, 9, v3\ns_waitcnt lgkmcnt(0)\ns_barrier")
        tmp = [give[0], give[1], OFR]
        for u in range(nu):
            for q in range(4): k(f"ds_read_b128 {vr(tmp[u]+4*q,4)}, v5 offset:{4096*u+1024*q}")
        for u in range(nu):
            k(f"s_waitcnt lgkmcnt({4*(nu-1-u)})")
            for i in range(0, 16, 2): k(f"v_pk_add_f32 {vr(keep[u]+i,2)}, {vr(keep[u]+i,2)}, {vr(tmp[u]+i,2)}")
            for i in range(0, 16, 2): k(f"v_pk_mul_f32 {vr(keep[u]+i,2)}, {vr(keep[u]+i,2)}, v[12:13] op_sel_hi:[1,0]")
        if g == 1:
            np_ = k.lab("np")
            k(f"s_cmp_lg_u32 s{S_WAVE}, 4\ns_cbranch_scc1 {np_}")
            poll(k, f"buffer_load_dword v13, v14, {ws}, s31 offen sc1", sr(M32, 2), OPT.get('slo', 1), 13)
            k.label(np_)
        k("s_barrier")
        stamp(k, 9)
        order = [(0, s_) for s_ in range(4)] + [(1, s_) for s_ in range(4)] + [(0, 4), (1, 4)]
        for j in range(8): k(f"buffer_load_dwordx4 {vr(OFR+4*j,4)}, v{gL}, {ws}, s{28 if j < 4 else 33} offen offset:{1024*(j%4)} {LD}")
        for j in range(2):
            for h in range(2): k(f"buffer_load_dwordx2 {vr(OFR+32+4*j+2*h,2)}, v3, {ws}, s29 offen offset:{1024*j+256*h} {LD}")
        k(f"s_lshl_b32 s23, s{KQ}, 10\ns_add_u32 s23, s23, {g*4*12288}\nv_add_u32 v5, s23, v{gL}")
        k(f"v_mul_u32_u24 v7, 1280, v1\nv_lshl_add_u32 v7, v2, 3, v7\ns_mul_i32 s28, s{TB0}, 40960\ns_lshl_b32 s23, s{KQ}, 4\ns_add_u32 s28, s28, s23\ns_lshl_b32 s23, s{US}, 6\ns_add_u32 s29, s28, s23\ns_lshl_b32 s23, s{UA}, 6\ns_add_u32 s28, s28, s23")
        for j, (e, s_) in enumerate(order):
            k(f"s_waitcnt vmcnt({11-j if j < 8 else (2 if j == 8 else 0)})")
            for u in range(nu):
                k(f"v_mfma_f32_32x32x16_bf16 {vr(keep[u],16)}, {vr(wreg[e,s_,u],4)}, {vr(OFR+4*j,4)}, {vr(keep[u],16)}")
        k(f"s_nop {11 - (nu - 1)}")
        for u in range(nu):
            for q in range(4): k(f"ds_write_b128 v4, {vr(keep[u]+4*q,4)} offset:{4096*u+1024*q}")
        k("s_waitcnt lgkmcnt(0)\ns_barrier")
        R = 176
        for u in range(nu):
            for w_ in range(4): k(f"ds_read_b128 {vr(R+16*u+4*w_,4)}, v5 offset:{w_*12288+4096*u}")
        for u in range(nu):
            a = R + 16 * u
            k(f"s_waitcnt lgkmcnt({4*(nu-1-u)})")
            for s_ in (a + 4, a + 8, a + 12):
                for e in (0, 2): k(f"v_pk_add_f32 {vr(a+e,2)}, {vr(a+e,2)}, {vr(s_+e,2)}")
            k(f"v_cvt_pk_bf16_f32 v{a+4}, v{a}, v{a+1}\nv_cvt_pk_bf16_f32 v{a+5}, v{a+2}, v{a+3}")
            k(f"buffer_store_dwordx2 {vr(a+4,2)}, v7, {sr(SX,4)}, s{29 if u == 2 else 28} offen offset:{0 if u == 2 else 64*u}")
        if g == 0: k(f"s_branch {fin}")
    k.label(fin)
```

```python
import sys
from simple import *
from attn2 import *
import fz_a
from fz_a import *
A = sys.argv
for a in A[2:]:
    kv = a.split('=')
    OPT[kv[0]] = int(kv[1]) if len(kv) > 1 else 1
upto = OPT.get('upto', 4)
if OPT.get('nosc'): fz_a.SC = ''
k = Kern(NAME + "_kernel" if upto == 4 else "k1_kernel", vgpr=256, sgpr=102)
end, tab, co, fin = k.lab("end"), "L_tab", k.lab("co"), k.lab("fin")
prologue(k, tab, end)
k(f"s_cmp_lt_u32 s{S_WAVE}, 4\ns_cbranch_scc1 {co}")
sp, early = k.lab("sp"), k.lab("early")
loader(k, sp)
k.label(early)
import fz_b
fz_b.attn_early(k)
fz_b.attn_early2(k)
k(f"s_branch {fin}")
k.label(sp)
spare_wg(k)
k(f"s_branch {early}")
k.label(co)
consumer(k, sp, fz_b.attn_early)
k.label(fin)
if upto >= 3: fz_b.attn_main(k, end)
else:
    if OPT.get('stamp'): stamps_out(k, 4)
    k.label(end)
    k("s_endpgm")
emit_table(k, tab)
L = [(k, 256, 512, LDS_ALL)]
if upto == 3: L.append((k3_simple(), 1280, 64, 0))
assemble(L, sys.argv[1])
```

```python
import re, sys

def v(i): return f"v{i}"
def s(i): return f"s{i}"
def vr(i, n): return f"v{i}" if n == 1 else f"v[{i}:{i+n-1}]"
def sr(i, n): return f"s{i}" if n == 1 else f"s[{i}:{i+n-1}]"

class Kern:
    def __init__(self, name, vgpr=256, sgpr=102, accum=None):
        self.name = name; self.lines = []; self.vgpr = vgpr; self.sgpr = sgpr
        self.accum = accum or ((vgpr + 3) // 4 * 4)
        self.nlab = 0
    def __call__(self, text):
        for l in text.split("\n"):
            l = l.strip()
            if l: self.lines.append(l)
    def lab(self, base):
        self.nlab += 1
        return f"L_{self.name[:-7]}_{base}_{self.nlab}"
    def label(self, l): self.lines.append(l + ":")
    def text(self):
        out = [f".globl {self.name}", ".p2align 8", f".type {self.name},@function", f"{self.name}:"]
        for l in self.lines:
            out.append(l if l.endswith(":") or l.startswith(".") else "    " + l)
        return "\n".join(out) + "\n"
    def desc(self):
        return f""".p2align 6
.amdhsa_kernel {self.name}
  .amdhsa_next_free_vgpr {self.vgpr}
  .amdhsa_next_free_sgpr {self.sgpr}
  .amdhsa_accum_offset {self.accum}
  .amdhsa_group_segment_fixed_size 0
  .amdhsa_kernarg_size 88
  .amdhsa_user_sgpr_count 2
  .amdhsa_user_sgpr_kernarg_segment_ptr 1
  .amdhsa_system_sgpr_workgroup_id_x 1
.end_amdhsa_kernel
"""

REG = re.compile(r"\b([vsa])\[(\d+):(\d+)\]|\b([vsa])(\d+)\b|\b(vcc|exec|m0|vcc_lo|vcc_hi|exec_lo|exec_hi)\b")
TRANS = ("v_exp_", "v_log_", "v_rcp_", "v_rsq_", "v_sqrt_", "v_sin_", "v_cos_")

def regs_of(op):
    r = []
    for m in REG.finditer(op):
        if m.group(1): r += [(m.group(1), i) for i in range(int(m.group(2)), int(m.group(3)) + 1)]
        elif m.group(4): r.append((m.group(4), int(m.group(5))))
        else:
            n = m.group(6)
            if n.startswith("vcc"): r.append(("x", "vcc"))
            elif n.startswith("exec"): r.append(("x", "exec"))
            else: r.append(("x", "m0"))
    return r

class I:
    pass

def parse(line):
    note = line.split(";")[1] if ";" in line else ""
    line = line.split(";")[0].strip()
    i = I(); i.text = line; i.note = note
    parts = line.split(None, 1)
    i.op = parts[0]
    rest = parts[1] if len(parts) > 1 else ""
    ops = [o.strip() for o in re.split(r",(?![^\[]*\])", rest)] if rest else []
    i.ops = ops
    op = i.op
    i.defs = []; i.uses = []; i.cls = "other"; i.passes = 0; i.srcc = []; i.ab = []
    R = [regs_of(o) for o in ops]
    if op.startswith("v_mfma") or op.startswith("v_smfmac"):
        i.cls = "mfma"
        i.passes = 8 if "32x32" in op else 4
        i.defs = R[0]; i.ab = R[1] + R[2]
        if op.startswith("v_smfmac"):
            i.srcc = R[0]; i.ab += R[3]
        else:
            i.srcc = R[3]
        i.uses = i.ab + i.srcc
    elif op.startswith("v_"):
        i.cls = "valu"
        i.trans = op.startswith(TRANS)
        if op.startswith("v_cmp"):
            i.defs = R[0]; i.uses = sum(R[1:], [])
        elif op.startswith(("v_add_co", "v_sub_co", "v_addc_co", "v_subb_co")):
            i.defs = R[0] + R[1]; i.uses = sum(R[2:], [])
        elif op.startswith("v_permlane") and "swap" in op:
            i.defs = R[0] + R[1]; i.uses = R[0] + R[1]
        elif op.startswith(("v_fmac", "v_pk_fmac", "v_writelane")):
            i.defs = R[0]; i.uses = sum(R, [])
        elif op.startswith("v_nop"):
            pass
        else:
            i.defs = R[0]; i.uses = sum(R[1:], [])
            if "UNUSED_PRESERVE" in line or "dpp" in op or "row_" in line or "quad_perm" in line: i.uses += R[0]
        i.dpp = ("dpp" in op) or ("row_" in line) or ("quad_perm" in line)
    elif op.startswith(("buffer_", "global_")):
        i.cls = "vmem"
        lds = " lds" in line or "_lds_" in op
        i.lds = lds
        if "load" in op and not lds:
            i.defs = R[0]; i.uses = sum(R[1:], [])
            if "d16" in op: i.uses += R[0]
        elif "load" in op:
            i.uses = sum(R, []) + [("x", "m0")]
        elif "store" in op:
            i.uses = sum(R, [])
            i.data = R[0] if op.startswith("buffer_") else R[1]
        elif "atomic" in op:
            ret = " sc0" in line
            if op.startswith("buffer_"):
                i.uses = sum(R, []); i.defs = R[0] if ret else []
            else:
                if ret: i.defs = R[0]; i.uses = sum(R[1:], [])
                else: i.uses = sum(R, [])
        else:
            pass
    elif op.startswith("ds_"):
        i.cls = "ds"
        if op.startswith(("ds_read", "ds_bpermute", "ds_permute", "ds_swizzle")) or "_rtn" in op:
            i.defs = R[0]; i.uses = sum(R[1:], [])
        else:
            i.uses = sum(R, [])
    elif op.startswith("s_load") or op.startswith("s_buffer_load") or op in ("s_memtime", "s_memrealtime"):
        i.cls = "smem"; i.defs = R[0]; i.uses = sum(R[1:], [])
    elif op.startswith("s_"):
        i.cls = "salu"
        if op.startswith(("s_cmp", "s_bitcmp")): i.uses = sum(R, [])
        elif op.startswith(("s_waitcnt", "s_nop", "s_barrier", "s_branch", "s_cbranch", "s_endpgm", "s_setprio", "s_sleep", "s_setpc")):
            i.uses = sum(R, []) if op.startswith("s_setpc") else []
        elif "saveexec" in op:
            i.defs = R[0] + [("x", "exec")]; i.uses = sum(R[1:], []) + [("x", "exec")]
        else:
            i.defs = R[0] if R else []; i.uses = sum(R[1:], [])
            if op.startswith(("s_addk", "s_mulk", "s_cmov")): i.uses += R[0]
    return i

def ov(a, b):
    return bool(set(a) & set(b))

def need(p, c):
    n = 0
    pd = p.defs
    if p.cls == "valu":
        vd = [r for r in pd if r[0] in "va"]
        sd = [r for r in pd if r[0] == "s" or r == ("x", "vcc")]
        if c.cls == "mfma" and ov(vd, c.uses): n = max(n, 2)
        if c.cls == "valu":
            if getattr(p, "trans", False) and not getattr(c, "trans", False) and ov(vd, c.uses): n = max(n, 1)
            if c.op.startswith(("v_readlane", "v_readfirstlane")) and ov(vd, c.uses): n = max(n, 1)
            if c.op.startswith("v_permlane") and ov(vd, c.uses): n = max(n, 2)
            if getattr(c, "dpp", False) and ov(vd, c.uses): n = max(n, 2)
            if ov(sd, c.uses): n = max(n, 4 if c.op.startswith(("v_readlane", "v_writelane")) else 2)
            if "sdwa" in p.op and ov(vd, c.uses + c.defs): n = max(n, 1)
        if c.cls == "vmem" and ov(sd, c.uses): n = max(n, 5)
        if c.cls in ("salu", "smem") and ov(sd, c.uses): n = max(n, 1)
        if getattr(p, "trans", False) and c.cls in ("vmem", "ds") and ov(vd, c.uses): n = max(n, 1)
    if p.cls == "mfma":
        big = 12 if p.passes == 8 else 8
        if c.cls in ("valu", "vmem", "ds") and ov(pd, c.uses + c.defs): n = max(n, big)
        if c.cls == "mfma":
            if ov(pd, c.ab): n = max(n, big)
            if ov(pd, c.srcc) and not (pd == c.srcc and p.passes == c.passes): n = max(n, big - 2)
            if ov(pd, c.defs) and not ov(pd, c.srcc) and not (pd == c.defs and p.passes == c.passes): n = max(n, big - 2)
        if c.cls == "valu" and ov(p.srcc, c.defs): n = max(n, 7 if p.passes == 8 else 3)
    if p.cls == "salu" and ("x", "m0") in pd and c.cls == "vmem" and getattr(c, "lds", False): n = max(n, 1)
    if p.cls == "vmem" and "store" in p.op and ("x3" in p.op or "x4" in p.op):
        if ov(p.data, c.defs): n = max(n, 2 if c.cls == "valu" else 1)
    return n

IGNORE = []
def check(k, maxvisit=2, verbose=True):
    ins = []; labels = {}
    for l in k.lines:
        if l.endswith(":"): labels[l[:-1]] = len(ins)
        elif l.startswith(".") or l.startswith(";"): continue
        else: ins.append(parse(l))
    errs = set()
    seen = set()
    sys.setrecursionlimit(100000)
    stack = [(0, (), (), (), {})]
    steps = 0
    while stack:
        pc, win, vm, lg, visits = stack.pop()
        win = list(win); vm = list(vm); lg = list(lg); visits = dict(visits)
        while pc < len(ins):
            steps += 1
            if steps > 3000000:
                print("checker: too many steps"); return errs
            c = ins[pc]
            dist = 0
            for (ppc, w) in reversed(win):
                p = ins[ppc]
                nd = need(p, c)
                if nd > dist:
                    errs.add((pc, f"HAZARD need {nd} have {dist}: [{ppc}] {p.text}  ->  [{pc}] {c.text}"))
                dist += w
                if dist >= 20: break
            touch = set(c.uses) | set(c.defs)
            for q, nm in ((vm, "vm"), (lg, "lgkm")):
                for (ppc, d) in q:
                    if "nowait" in c.note: continue
                    if d & touch and not (c.cls == ins[ppc].cls and c.cls in ("vmem", "ds", "smem") and not (d & set(c.uses)) ):
                        errs.add((pc, f"WAIT {nm}: [{ppc}] {ins[ppc].text}  ->  [{pc}] {c.text}"))
            if c.cls == "vmem": vm.append((pc, frozenset(c.defs)))
            elif c.cls == "ds": lg.append((pc, frozenset(c.defs)))
            elif c.cls == "smem": lg.append((pc, frozenset(c.defs)))
            if c.op == "s_waitcnt":
                m = re.search(r"vmcnt\((\d+)\)", c.text)
                if m:
                    n = int(m.group(1)); vm = vm[len(vm) - n:] if n < len(vm) else vm
                    if n == 0: vm = []
                m = re.search(r"lgkmcnt\((\d+)\)", c.text)
                if m:
                    n = int(m.group(1))
                    if n > 0 and any(ins[p].cls == "smem" for p, _ in lg):
                        pass
                    else:
                        lg = lg[len(lg) - n:] if n < len(lg) else lg
                        if n == 0: lg = []
            if len(lg) > 15 + 8: lg = lg[-23:]
            if len(vm) > 80: vm = vm[-80:]
            w = 1
            if c.op == "s_nop": w = int(c.ops[0], 0) + 1
            win.append((pc, w)); win = win[-20:]
            if c.op == "s_endpgm": break
            if c.op == "s_branch" or c.op.startswith("s_cbranch"):
                t = labels[c.ops[0]]
                cnt = visits.get(pc, 0)
                key = (pc, tuple(p for p, _ in win[-12:]), tuple(p for p, d in vm if d), tuple(p for p, d in lg if d), len(vm), len(lg))
                if key in seen: break
                seen.add(key)
                if c.op == "s_branch":
                    if cnt >= maxvisit: break
                    visits[pc] = cnt + 1; pc = t; continue
                if cnt < maxvisit and "one" not in c.note:
                    nv = dict(visits); nv[pc] = cnt + 1
                    stack.append((t, tuple(win), tuple(vm), tuple(lg), nv))
            pc += 1
    if verbose:
        for e in sorted(errs)[:6]: print(' ', e[1])
    return errs
```

```python
from common import *

OPT = {}
WS_WT = 0x1600000
WS_FH = 0x1900000
WS_FO = 0x1908000
WS_FQ = 0x1910000
SPIN = 400000
WS_STAMP = 0x1A00000
SZ['ws'] = 0x1A00000
LDS_ALL = 163840
XSLOT, WBASE, WSLOT, UOFF = 32768, 98304, 24640, 12320
K_GU, K_QK, K_V, K_G, K_SP = range(5)
GLDS = 147584

def wg_table():
    tab = [None] * 256
    R = OPT.get('R', 3)
    nq = 0
    rot = lambda cb, rb: ((OPT.get('rc', 0) * cb + OPT.get('rr', 1) * rb) % R) * OPT.get('rs', 10) // R
    for half in range(2):
        for qx in range(4):
            x = half + 2 * qx
            L = [(K_GU, (18 * qx + j) // 4, 4 * half + (18 * qx + j) % 4) for j in range(18)]
            L += [(K_V if 3 * qx + j // 4 >= 8 else K_QK, 3 * qx + j // 4, 4 * half + j % 4) for j in range(12)]
            for j, (kd, cb, rb) in enumerate(L):
                tab[x + 8 * j] = (kd, cb, rb, rot(cb, rb) | (nq << 8))
                if kd != K_GU: nq += 1
            tab[x + 8 * 30] = (K_G, 0, 4 * half + qx, 0)
            tab[x + 8 * 31] = (K_SP, x, 0, 0)
    return tab

P_X, P_WQKV, P_WO, P_WG, P_WU, P_WD, P_GW, P_OUT, P_DBG, P_WS = 36, 38, 40, 44, 46, 48, 50, 52, 54, 56
SX, SW, SWS = 8, 12, 16
TAB = 60
S_WAVE, S_KIND, S_PAR, S_STATE, S_SLOT, S_DELTA, S_CNT = 3, 4, 5, 6, 7, 20, 21
DUMMY = 15
SC = "sc1"

def stamp(k, i, mode=1):
    if OPT.get('stamp') == mode or (OPT.get('stamp') and i < (4 if OPT.get('stamp') == 2 else 1) and mode == 1): k(f"{'s_memrealtime' if OPT.get('rt') else 's_memtime'} {sr(80+2*i,2)}")

def stamps_out(k, n):
    k("s_mov_b64 exec, -1\ns_waitcnt vmcnt(0) lgkmcnt(0)")
    k(f"{'s_memrealtime' if OPT.get('rt') else 's_memtime'} {sr(80+2*(n-1),2)}\ns_memrealtime s[14:15]\ns_waitcnt lgkmcnt(0)")
    k(f"s_lshl_b32 s22, s2, 3\ns_add_u32 s22, s22, s{S_WAVE}\ns_mul_i32 s22, s22, {4*12}\ns_add_u32 s22, s22, {WS_STAMP}\ns_add_u32 s{SWS+2}, s{SWS+2}, 0x400000")
    k("v_mov_b32 v1, 0\nv_mov_b32 v2, s81\nv_mov_b32 v3, s14")
    k(f"s_mov_b64 exec, 1\nbuffer_store_dword v2, v1, {sr(SWS,4)}, s22 offen\nbuffer_store_dword v3, v1, {sr(SWS,4)}, s22 offen offset:44")
    for i in range(1, n):
        k(f"s_sub_u32 s23, s{80+2*i}, s80\nv_mov_b32 v2, s23\nbuffer_store_dword v2, v1, {sr(SWS,4)}, s22 offen offset:{4*i}")

def prologue(k, tablabel, end):
    k(f"s_cmp_ge_u32 s2, 256\ns_cbranch_scc1 {end}")
    stamp(k, 0)
    if OPT.get('dbl'): k("s_memrealtime s[100:101]")
    if OPT.get('stamp'): k("s_memrealtime s[14:15]\ns_waitcnt lgkmcnt(0)\ns_mov_b32 s81, s14")
    k("s_load_dwordx16 s[36:51], s[0:1], 0\ns_load_dwordx4 s[52:55], s[0:1], 64\ns_load_dwordx2 s[56:57], s[0:1], 80")
    k("s_getpc_b64 s[58:59]")
    here = "L_pc0"
    k.label(here)
    k(f"s_lshl_b32 s22, s2, 4\ns_add_u32 s22, s22, {tablabel}-{here}\ns_add_u32 s22, s58, s22\ns_addc_u32 s23, s59, 0")
    k(f"s_load_dwordx4 {sr(TAB,4)}, s[22:23], 0")
    if not OPT.get('nocodepf'):
        k(f"v_lshlrev_b32 v1, 7, v0\nv_min_u32 v1, {tablabel}-{here}, v1\nglobal_load_dword v{DUMMY}, v1, s[58:59]")
    k(f"v_lshrrev_b32 v1, 6, v0\nv_and_b32 v0, 63, v0\nv_readfirstlane_b32 s{S_WAVE}, v1")
    for r, n in ((SX, 'x'), (SWS, 'ws')):
        k(f"s_mov_b32 s{r+2}, {SZ[n]}\ns_mov_b32 s{r+3}, 0x20000")
    k(f"s_mov_b32 s{SW+3}, 0x20000")

def emit_table(k, tablabel):
    k(".p2align 6")
    k(f".type {tablabel},@object")
    k.label(tablabel)
    for e in wg_table(): k(".long %d, %d, %d, %d" % e)

def poll(k, load, mask, sleep, dst=3):
    pl, p1 = k.lab("pl"), k.lab("p1")
    k(f"s_mov_b64 exec, {mask}\ns_mov_b32 s21, {SPIN}\ns_branch {p1}")
    k.label(pl)
    k(f"s_sleep {sleep}")
    k.label(p1)
    k(f"{load}\ns_sub_u32 s21, s21, 1\ns_waitcnt vmcnt(0)\nv_cmp_ne_u32 vcc, 1, v{dst}\ns_cselect_b64 exec, 0, exec\ns_and_b64 vcc, vcc, exec\ns_cbranch_scc1 {pl}")
    k("s_mov_b64 exec, -1")
def wait_cleared(k):
    sk = k.lab("wc")
    k(f"s_cmp_lg_u32 s{S_WAVE}, 4\ns_cbranch_scc1 {sk}\nv_mov_b32 v13, 0")
    poll(k, f"global_load_dword v3, v13, {sr(P_DBG,2)} offset:128 sc1", 1, 4)
    k.label(sk)

PF = 72
def pf_setup(k, w, stage):
    k(f"""s_and_b32 s23, s{w}, 3
    s_mov_b32 s{PF}, s{P_WG}
    s_mov_b32 s{PF+1}, s{P_WG+1}
    s_mov_b32 s{PF+2}, {SZ['wg']}
    s_mov_b32 s{PF+3}, 0x20000
    s_movk_i32 s76, 864
    s_movk_i32 s77, 128
    s_mov_b32 s78, {64*3456}
    s_cmp_eq_u32 s23, 3
    s_cselect_b32 s{PF}, s{P_WU}, s{PF}
    s_cselect_b32 s{PF+1}, s{P_WU+1}, s{PF+1}
    s_cmp_eq_u32 s23, 1
    s_cselect_b32 s{PF}, s{P_WQKV}, s{PF}
    s_cselect_b32 s{PF+1}, s{P_WQKV+1}, s{PF+1}
    s_cselect_b32 s{PF+2}, {SZ['wqkv']}, s{PF+2}
    s_cselect_b32 s76, 960, s76
    s_cselect_b32 s78, {64*3840}, s78
    s_cmp_eq_u32 s23, 0
    s_cselect_b32 s{PF}, s{P_X}, s{PF}
    s_cselect_b32 s{PF+1}, s{P_X+1}, s{PF+1}
    s_cselect_b32 s{PF+2}, {SZ['x']}, s{PF+2}
    s_cselect_b32 s76, 10240, s76
    s_cselect_b32 s77, 1280, s77
    s_cselect_b32 s78, 128, s78
    s_mul_i32 s76, s76, s2""")
    if stage: k(f"s_mul_i32 s23, s78, {stage}\ns_add_u32 s76, s76, s23")
    k("s_lshl_b32 s23, s77, 3\ns_sub_u32 s78, s78, s23")
def pf_stage(k):
    for i in range(8): k(f"s_buffer_load_dword s79, {sr(PF,4)}, s76\ns_add_u32 s76, s76, s77")
    k("s_add_u32 s76, s76, s78")

def tj_addr(k):
    k(f"""v_lshlrev_b32 v24, 4, v0
    v_lshrrev_b32 v2, 4, v0
    v_bfe_u32 v3, v0, 2, 2
    v_xor_b32 v26, v2, v3
    v_lshlrev_b32 v26, 6, v26
    v_and_b32 v27, 3, v0
    v_lshl_add_u32 v26, v27, 4, v26
    v_mul_u32_u24 v2, 1280, v2
    v_add_u32 v25, v2, v26
    v_lshrrev_b32 v1, 5, v0
    v_lshlrev_b32 v1, 10, v1
    v_lshl_add_u32 v1, v3, 8, v1
    v_bfe_u32 v2, v0, 4, 1
    v_lshl_add_u32 v1, v2, 5, v1
    v_lshl_add_u32 v1, v27, 3, v1
    v_add_u32 v1, s31, v1""")
    for u in range(4): k(f"v_xor_b32 v2, {u}, v3\nv_lshl_add_u32 v{20+u}, v2, 6, v1")
def tj_load(k, job, dst, lds=0):
    SJ = 72
    k(f"""s_min_u32 s64, s{job}, 739
    s_mul_i32 s76, s64, 52429
    s_lshr_b32 s76, s76, 18
    s_mul_i32 s30, s76, 5
    s_sub_u32 s64, s64, s30
    s_lshl_b32 s65, s76, 4
    s_movk_i32 s66, {4*1280}
    s_movk_i32 s67, {8*1280}
    s_mov_b32 s{SJ}, s{P_WD}
    s_mov_b32 s{SJ+1}, s{P_WD+1}
    s_mov_b32 s{SJ+2}, {SZ['wd']}
    s_sub_u32 s30, s76, 108
    s_mul_i32 s23, s30, 20
    s_cmp_ge_u32 s76, 108
    s_cselect_b32 s65, s23, s65
    s_cselect_b32 s{SJ}, s{P_WO}, s{SJ}
    s_cselect_b32 s{SJ+1}, s{P_WO+1}, s{SJ+1}
    s_cselect_b32 s{SJ+2}, {SZ['wo']}, s{SJ+2}
    s_sub_u32 s30, s76, 140
    s_mul_i32 s23, s30, 80
    s_add_u32 s23, s23, 16
    s_cmp_ge_u32 s76, 140
    s_cselect_b32 s65, s23, s65
    s_cselect_b32 s66, {40*1280}, s66
    s_cselect_b32 s67, {20*1280}, s67
    s_mul_i32 s65, s65, 1280
    s_lshl_b32 s23, s64, 8
    s_add_u32 s65, s65, s23
    s_add_u32 m0, s31, {lds}
    s_add_u32 s30, s65, s66
    buffer_load_dwordx4 v25, {sr(SJ,4)}, s65 offen lds
    s_add_u32 m0, s31, {lds+1024}
    s_add_u32 s65, s65, s67
    buffer_load_dwordx4 v25, {sr(SJ,4)}, s30 offen lds
    s_add_u32 m0, s31, {lds+2048}
    s_add_u32 s30, s65, s66
    buffer_load_dwordx4 v25, {sr(SJ,4)}, s65 offen lds
    s_add_u32 m0, s31, {lds+3072}
    s_mul_i32 s23, s76, 20
    buffer_load_dwordx4 v25, {sr(SJ,4)}, s30 offen lds
    s_lshl_b32 s30, s64, 2
    s_add_u32 s23, s23, s30
    s_lshl_b32 s23, s23, 10
    s_add_u32 s{dst}, s23, {WS_WT}""")

def loader(k, spare):
    vX = 4
    lw = 22
    k(f"s_sub_u32 s{lw}, s{S_WAVE}, 4")
    k(f"""v_lshrrev_b32 v1, 3, v0
    s_lshl_b32 s23, s{lw}, 3
    v_add_u32 v1, s23, v1
    v_mul_u32_u24 v1, 1280, v1
    s_and_b32 s23, s{lw}, 1
    s_lshl_b32 s23, s23, 2
    v_lshrrev_b32 v2, 4, v0
    v_add_u32 v6, s23, v2
    v_and_b32 v3, 7, v0
    v_xor_b32 v6, v6, v3
    v_lshl_add_u32 v{vX}, v6, 4, v1""")
    k(f"s_and_b32 s23, s{lw}, 1\ns_mul_i32 s23, s23, {32*3456}\ns_movk_i32 s24, {3456-192}\ns_mul_i32 s25, s{lw}, {16*3840}\ns_movk_i32 s26, {3840-320}")
    for j in range(3):
        k(f"v_add_u32 v1, {64*j}, v0\nv_mul_u32_u24 v2, 1366, v1\nv_lshrrev_b32 v2, 14, v2\nv_lshl_add_u32 v1, v1, 4, s23\nv_mad_u32_u24 v{5+j}, v2, s24, v1")
    for j in range(5):
        k(f"v_add_u32 v1, {64*j}, v0\nv_mul_u32_u24 v2, 1639, v1\nv_lshrrev_b32 v2, 15, v2\nv_lshl_add_u32 v1, v1, 4, s25\nv_mad_u32_u24 v{8+j}, v2, s26, v1")
    k(f"s_lshl_b32 s24, s{lw}, 10\ns_mov_b32 s32, 0\ns_mov_b32 s33, {WBASE}")
    k("s_waitcnt lgkmcnt(0)")
    k(f"s_mov_b32 s{SX}, s{P_X}\ns_mov_b32 s{SX+1}, s{P_X+1}\ns_mov_b32 s{SWS}, s{P_WS}\ns_mov_b32 s{SWS+1}, s{P_WS+1}")
    k(f"s_cmp_eq_u32 s{TAB}, {K_SP}\ns_cbranch_scc1 {spare}")
    XO, WO, RX, RW = 26, 27, 34, 35
    k(f"s_mul_i32 s{XO}, s{TAB+2}, {256*1280}\ns_and_b32 s{RX}, s{TAB+3}, 0xff\ns_lshl_b32 s23, s{RX}, 7\ns_add_u32 s{XO}, s{XO}, s23\ns_mov_b32 s{RW}, s{RX}")
    def wb(n):
        k(f"s_waitcnt vmcnt({n})\ns_barrier")
        if OPT.get('bst'): bst()
    def bst():
        k("s_memtime s[96:97]\ns_waitcnt lgkmcnt(0)\ns_sub_u32 s96, s96, s80\ns_mov_b32 m0, s98\ns_add_u32 s98, s98, 1\nv_writelane_b32 v250, s96, m0")
    if OPT.get('bst'):
        k("s_mov_b32 s98, 0\nv_mov_b32 v250, 0")
        bst()
    def issueX():
        k(f"s_add_u32 s28, s32, s24")
        for j in range(8):
            k(f"s_add_u32 m0, s28, {4096*j}\ns_add_u32 s30, s{XO}, {j*40960}")
            k(f"buffer_load_dwordx4 v{vX}, {sr(SX,4)}, s30 offen lds")
        k(f"s_add_u32 s{RX}, s{RX}, 1\ns_cmp_eq_u32 s{RX}, 10\ns_cselect_b32 s{RX}, 0, s{RX}\ns_cselect_b32 s23, -9, 1\ns_lshl_b32 s23, s23, 7\ns_add_u32 s{XO}, s{XO}, s23")
        k(f"s_add_u32 s32, s32, {XSLOT}\ns_cmp_eq_u32 s32, {3*XSLOT}\ns_cselect_b32 s32, 0, s32")
    def issueW(gu):
        rs = 3456 if gu else 3840
        k(f"s_add_u32 s28, s33, s25")
        for j in range(6 if gu else 5):
            k(f"s_add_u32 m0, s28, {1024*j}")
            if gu and j == 3: k(f"s_add_u32 s30, s{WO}, {16*rs}")
            else: k("s_nop 0")
            k(f"buffer_load_dwordx4 v{(5 + j % 3) if gu else (8 + j)}, {sr(SW,4)}, s{30 if gu and j >= 3 else WO} offen lds")
        k(f"s_add_u32 s{RW}, s{RW}, 1\ns_cmp_eq_u32 s{RW}, 10\ns_cselect_b32 s{RW}, 0, s{RW}\ns_cselect_b32 s23, -9, 1\ns_mul_i32 s23, s23, {64*rs}\ns_add_u32 s{WO}, s{WO}, s23")
        k(f"s_xor_b32 s33, s33, {WBASE ^ (WBASE + WSLOT)}")
    PFN = OPT.get('pfn', 0)
    lq, ldone = k.lab("ldq"), k.lab("lddone")
    k(f"s_cmp_lg_u32 s{TAB}, {K_GU}\ns_cbranch_scc1 {lq}")
    for gu in (True, False):
        rs = 3456 if gu else 3840
        if gu:
            k(f"s_cmp_ge_u32 s{lw}, 2\ns_cselect_b32 s{SW}, s{P_WU}, s{P_WG}\ns_cselect_b32 s{SW+1}, s{P_WU+1}, s{P_WG+1}\ns_cselect_b32 s25, {UOFF}, 0\ns_mov_b32 s{SW+2}, {SZ['wg']}")
            k(f"s_and_b32 s23, s{lw}, 1\ns_mul_i32 s23, s23, 6144\ns_add_u32 s25, s25, s23")
        else:
            k.label(lq)
            k(f"s_mov_b32 s{SW}, s{P_WQKV}\ns_mov_b32 s{SW+1}, s{P_WQKV+1}\ns_mov_b32 s{SW+2}, {SZ['wqkv']}\ns_mul_i32 s25, s{lw}, 5120")
        k(f"s_mul_i32 s{WO}, s{TAB+1}, {192 if gu else 320}\ns_mul_i32 s23, s{RW}, {64*rs}\ns_add_u32 s{WO}, s{WO}, s23")
        nW = 6 if gu else 5
        l = k.lab("ll"); l1 = k.lab("l1"); l2 = k.lab("l2"); l3 = k.lab("l3")
        if not gu:
            k(f"s_lshl_b32 s31, s{lw}, 12\ns_add_u32 s31, s31, 147456\ns_mov_b32 s75, 0x20000\ns_lshr_b32 s77, s{TAB+3}, 8\ns_lshl_b32 s77, s77, 2\ns_add_u32 s77, s77, s{lw}\nv_mov_b32 v24, 0\nv_mov_b32 v25, 0")
            k(f"s_cmp_eq_u32 s{TAB}, {K_G}\ns_cselect_b32 s78, 0, {5 << OPT.get('j0', 4)}\ns_cselect_b32 s79, 0, {20 << OPT.get('j0', 4)}")
        k(f"s_mov_b32 s{S_CNT}, 0")
        k.label(l)
        issueW(gu)
        k(f"s_cmp_eq_u32 s{S_CNT}, 1\ns_cbranch_scc0 {l1}")
        wb(nW)
        if not gu: tj_addr(k)
        issueX()
        k.label(l1)
        k(f"s_cmp_eq_u32 s{S_CNT}, 9\ns_cbranch_scc1 {l3}")
        issueX()
        if not gu:
            ns_, nl, w12, nb_ = k.lab("ns"), k.lab("nl"), k.lab("w12"), k.lab("nb")
            k(f"s_bitcmp0_b32 s79, s{S_CNT}\ns_cbranch_scc1 {ns_}")
            for u in range(4): k(f"ds_read_b64_tr_b16 {vr(32+4*u,2)}, v{20+u}\nds_read_b64_tr_b16 {vr(34+4*u,2)}, v{20+u} offset:2048")
            k("s_waitcnt lgkmcnt(0)")
            for u in range(4): k(f"buffer_store_dwordx4 {vr(32+4*u,4)}, v24, {sr(SWS,4)}, s42 offen offset:{1024*u} {SC}")
            k(f"s_bitcmp0_b32 s78, s{S_CNT}\ns_cbranch_scc1 {w12}")
            k.label(ns_)
            k(f"s_bitcmp0_b32 s78, s{S_CNT}\ns_cbranch_scc1 {nl}")
            tj_load(k, 77, 42)
            k(f"s_add_u32 s77, s77, 384\ns_waitcnt vmcnt(16)\ns_bitcmp1_b32 s79, s{S_CNT}\ns_cbranch_scc1 {nb_}")
            k.label(w12)
            k("s_waitcnt vmcnt(12)")
            k.label(nb_)
            k(f"s_barrier\ns_branch {l2}")
            k.label(nl)
        k(f"s_cmp_eq_u32 s{S_CNT}, 0\ns_cbranch_scc1 {l2}")
        wb(8)
        k.label(l2)
        k(f"s_add_u32 s{S_CNT}, s{S_CNT}, 1\ns_branch {l}")
        k.label(l3)
        if OPT.get('cpf1', 1):
            k(f"s_lshl_b32 s23, s{lw}, 13\ns_add_u32 s23, s23, L_epi-L_pc0\nv_lshl_add_u32 v3, v0, 7, s23\nv_min_u32 v3, L_tab-L_pc0, v3\nglobal_load_dword v{DUMMY}, v3, s[58:59]")
            wb(1)
        else: wb(0)
        wait_cleared(k)
        if gu: k(f"s_branch {ldone}")
    stamp(k, 5, 2)
    k("s_barrier")
    stamp(k, 6, 2)
    sk = k.lab("na")
    k(f"s_cmp_lg_u32 s{lw}, 0\ns_cbranch_scc1 {sk}")
    k(f"s_cmp_eq_u32 s{TAB}, {K_G}\ns_cselect_b32 s23, 12, s{TAB+1}\ns_lshl_b32 s23, s23, 3\ns_add_u32 s23, s23, s{TAB+2}\ns_lshl_b32 s23, s23, 7\ns_add_u32 s23, s23, {WS_FQ}")
    k(f"v_mov_b32 v3, 1\ns_mov_b64 exec, 1\nbuffer_store_dword v3, v24, {sr(SWS,4)}, s23 offen sc1\ns_mov_b64 exec, -1")
    stamp(k, 7, 2)
    k.label(sk)
    k.label(ldone)
    if OPT.get('bst'):
        k(f"s_lshl_b32 s23, s2, 7\ns_add_u32 s23, s23, {WS_STAMP + (1 << 20)}\ns_add_u32 s{SWS+2}, s{SWS+2}, 0x400000\nv_lshlrev_b32 v1, 2, v0\ns_mov_b64 exec, 0xffffffff")
        k(f"buffer_store_dword v250, v1, {sr(SWS,4)}, s23 offen\ns_waitcnt vmcnt(0)\ns_mov_b64 exec, -1\ns_sub_u32 s{SWS+2}, s{SWS+2}, 0x400000")

ACC = 64
XA = [4, 5, 6, 7]; WA = 8
XF = [16, 32]; WF = 48
ZR = 12
EAV = [9, 10, 11, 13, 14]
ET = 48
def zero_acc(base, n):
    return [f"v_mfma_f32_32x32x8_bf16 {vr(base+16*i,16)}, {vr(ZR,2)}, {vr(ZR,2)}, 0" for i in range(n)]

class DsQ:
    def __init__(self, k, init): self.k = k; self.q = list(init)
    def issue(self, tag, text): self.k(text); self.q.append(tag)
    def wait(self, tags):
        hit = [i for i, t in enumerate(self.q) if t in tags]
        if not hit: return
        self.q = self.q[max(hit) + 1:]
        assert len(self.q) <= 15
        self.k(f"s_waitcnt lgkmcnt({len(self.q)})")

def gemm_loop(k, gu, vt, trips=10):
    NT, NU = (4, 3) if gu else (2, 5)
    xf = XF if gu else [16, 24]; wf = WF if gu else 32
    rowb, ub = (192, 32) if gu else (320, 64)
    A = lambda i, j: ACC + 16 * (j * NT + i)
    xr = lambda kk: [f"ds_read_b128 {vr(xf[kk%2]+4*i,4)}, v{XA[kk%4]} offset:{4096*i}" for i in range(NT)]
    wr = lambda kk, j: [f"ds_read_b64_tr_b16 {vr(wf+4*j+2*jj,2)}, v{WA} offset:{(16*(kk%4)+4*jj)*rowb + ub*j}" for jj in range(2)]
    k("\n".join(xr(0)))
    for j in range(NU): k("\n".join(wr(0, j)))
    k(f"s_mov_b32 s{S_CNT}, {trips}\ns_mov_b32 s{S_SLOT}, 0\ns_mov_b32 s69, {WSLOT}")
    loop = k.lab("gl")
    k(".p2align 6")
    k.label(loop)
    jb = 0 if gu else 1
    for kk in range(4):
        k(f"s_waitcnt lgkmcnt({2*(NU-1)})")
        pend = xr(kk + 1)
        for j in range(NU):
            if j > 0 and not (kk == 3 and j > jb):
                k(f"s_waitcnt lgkmcnt({2*(NU-1) + NT if kk < 3 else 2*(NU-1-j)})")
            for i in range(NT):
                a, b = vr(wf + 4*j, 4), vr(xf[kk%2] + 4*i, 4)
                if vt: a, b = b, a
                k(f"v_mfma_f32_32x32x16_bf16 {vr(A(i,j),16)}, {a}, {b}, {vr(A(i,j),16)}")
                if i == NT - 1: pend = pend + wr(kk + 1, j)
                if kk == 3 and j == jb and i == NT - 1:
                    k(f"v_add_u32 v{XA[0]}, s{S_DELTA}, v{XA[0]}\nv_add_u32 v{WA}, s69, v{WA}\ns_sub_u32 s69, 0, s69")
                    if trips == 10:
                        nb = k.lab("nb")
                        k(f"s_waitcnt lgkmcnt(0)\ns_cmp_eq_u32 s{S_CNT}, 0\ns_cbranch_scc1 {nb}\ns_barrier")
                        k.label(nb)
                    else: k("s_waitcnt lgkmcnt(0)\ns_barrier")
                if not (kk == 3 and (j < jb or (j == jb and i < NT - 1))):
                    n = len(pend) if (j == NU - 1 and i == NT - 1) else min(len(pend), 2)
                    k("\n".join(pend[:n])); pend = pend[n:]
                if kk == 2 and j == NU - 1 and i == 0:
                    k(f"s_add_u32 s{S_SLOT}, s{S_SLOT}, 1\ns_cmp_eq_u32 s{S_SLOT}, 3\ns_cselect_b32 s{S_DELTA}, s70, s71\ns_cselect_b32 s{S_SLOT}, 0, s{S_SLOT}\ns_sub_u32 s{S_CNT}, s{S_CNT}, 1")
                if kk == 3 and j == NU - 1 and i == 0:
                    for a in XA[1:]: k(f"v_add_u32 v{a}, s{S_DELTA}, v{a}")
    k(f"s_cmp_lg_u32 s{S_CNT}, 0\ns_cbranch_scc1 {loop}")

def consumer(k, spare, pre_epilogue=None):
    ws = sr(SWS, 4)
    w = S_WAVE
    k("v_and_b32 v1, 31, v0\nv_lshrrev_b32 v2, 5, v0")
    k(f"v_mov_b32 v{ZR}, 0\nv_mov_b32 v{ZR+1}, 0")
    k(f"s_mov_b32 s70, {(-2*XSLOT) & 0xffffffff}\ns_mov_b32 s71, {XSLOT}")
    k("\n".join(zero_acc(ACC, 12)))
    k(f"v_bfe_u32 v3, v1, 1, 3\nv_xor_b32 v3, v3, v2\nv_lshlrev_b32 v56, 7, v1")
    for kk in range(4):
        k(f"v_xor_b32 v57, {2*kk}, v3\nv_lshl_add_u32 v{XA[kk]}, v57, 4, v56")
    k(f"v_bfe_u32 v3, v0, 2, 2\nv_lshl_add_u32 v56, v2, 3, v3\nv_bfe_u32 v57, v0, 4, 1\nv_and_b32 v58, 3, v0\nv_lshlrev_b32 v58, 3, v58")
    k(f"s_and_b32 s23, s{w}, 1\ns_mul_i32 s23, s23, 96\ns_add_u32 s23, s23, {WBASE}\ns_movk_i32 s24, 192\ns_movk_i32 s25, {UOFF}\ns_movk_i32 s26, 320")
    k(f"v_mad_u32_u24 v{WA}, v56, s24, v58\nv_mad_u32_u24 v{WA}, v57, s25, v{WA}\nv_add_u32 v{WA}, s23, v{WA}")
    k("v_lshlrev_b32 v59, 7, v0")
    k(f"v_mad_u32_u24 v9, v56, s26, v58\nv_lshl_add_u32 v9, v57, 5, v9\nv_add_u32 v9, {WBASE}, v9")
    k("s_waitcnt lgkmcnt(0)")
    k(f"s_mov_b32 s{SWS}, s{P_WS}\ns_mov_b32 s{SWS+1}, s{P_WS+1}")
    if OPT.get('xpf', 1):
        k(f"s_mov_b32 s{SX}, s{P_X}\ns_mov_b32 s{SX+1}, s{P_X+1}\ns_lshl_b32 s23, s2, 2\ns_add_u32 s23, s23, s{w}\ns_mul_i32 s23, s23, 2560\ns_mov_b64 exec, 0xfffff")
        k(f"buffer_load_dword v{DUMMY}, v59, {sr(SX,4)}, s23 offen\ns_mov_b64 exec, -1")
    if OPT.get('wpf', 0):
        n = OPT['wpf']
        k(f"""s_mov_b32 s{SW}, s{P_WG}
        s_mov_b32 s{SW+1}, s{P_WG+1}
        s_movk_i32 s24, {864*n}
        s_cmp_eq_u32 s{w}, 1
        s_cselect_b32 s{SW}, s{P_WQKV}, s{SW}
        s_cselect_b32 s{SW+1}, s{P_WQKV+1}, s{SW+1}
        s_cselect_b32 s24, {960*n}, s24
        s_cmp_eq_u32 s{w}, 3
        s_cselect_b32 s{SW}, s{P_WU}, s{SW}
        s_cselect_b32 s{SW+1}, s{P_WU+1}, s{SW+1}
        s_mul_i32 s23, s24, s2
        s_add_u32 s{SW+2}, s23, s24
        s_cmp_eq_u32 s{w}, 0
        s_cselect_b32 s{SW+2}, 0, s{SW+2}
        buffer_load_dword v{DUMMY}, v59, {sr(SW,4)}, s23 offen""")
    if OPT.get('pfn', 0):
        pf_setup(k, w, 0)
        l = k.lab("pf")
        k(f"s_mov_b32 s{S_CNT}, {OPT.get('pfn', 0)}")
        k.label(l)
        pf_stage(k)
        k(f"s_sub_u32 s{S_CNT}, s{S_CNT}, 1\ns_cmp_lg_u32 s{S_CNT}, 0\ns_cbranch_scc1 {l}")
    done, lq, lv, qd, lg = k.lab("cdone"), k.lab("cq"), k.lab("cv"), k.lab("qd"), k.lab("cg")
    k(f"s_cmp_eq_u32 s{TAB}, {K_SP}\ns_cbranch_scc1 {spare}\ns_cmp_lg_u32 s{TAB}, {K_GU}\ns_cbranch_scc1 {lq}")
    k(f"s_lshr_b32 s23, s{w}, 1\ns_lshl_b32 s23, s23, 14")
    for a in XA: k(f"v_add_u32 v{a}, s23, v{a}")
    k("s_barrier")
    stamp(k, 1)
    k("s_waitcnt lgkmcnt(0)")
    gemm_loop(k, True, False)
    k.label("L_epi")
    stamp(k, 2)
    k(f"s_lshl_b32 s31, s{TAB+2}, 1\ns_lshr_b32 s26, s{w}, 1\ns_add_u32 s31, s31, s26\ns_mul_i32 s34, s31, {4*108}\ns_lshl_b32 s29, s{TAB+1}, 1\ns_and_b32 s27, s{w}, 1\ns_add_u32 s29, s29, s27\ns_mul_i32 s29, s29, 3")
    k(f"s_add_u32 s34, s34, s29\ns_lshl_b32 s34, s34, 10\ns_add_u32 s43, s34, {WS_HF}\ns_mov_b32 s32, {f32hex(-LOG2E)}")
    k("s_waitcnt lgkmcnt(0)")
    for n in range(13):
        if n == OPT.get('e1', 8): pre_epilogue(k)
        if n == OPT.get('e2', 12): k("s_barrier")
        if n == 12: break
        a = ACC + 16 * n; t = ACC + 4 * n
        for e in range(0, 8, 2): k(f"v_pk_mul_f32 {vr(a+e,2)}, {vr(a+e,2)}, s[32:33] op_sel_hi:[1,0]")
        for e in range(8): k(f"v_exp_f32 v{a+e}, v{a+e}")
        for e in range(0, 8, 2): k(f"v_pk_add_f32 {vr(a+e,2)}, {vr(a+e,2)}, 1.0 op_sel_hi:[1,0]")
        for e in range(8): k(f"v_rcp_f32 v{a+e}, v{a+e}")
        for e in range(0, 8, 2): k(f"v_pk_mul_f32 {vr(a+e,2)}, {vr(a+e,2)}, {vr(a+8+e,2)}")
        for e in range(4): k(f"v_cvt_pk_bf16_f32 v{t+e}, v{a+2*e}, v{a+2*e+1}")
    k(f"s_branch {done}")
    k.label(lq)
    k(f"s_lshl_b32 s23, s{w}, 13\nv_mov_b32 v{WA}, v9")
    for a in XA: k(f"v_add_u32 v{a}, s23, v{a}")
    k(f"s_lshl_b32 s65, s{TAB+2}, 3\ns_lshl_b32 s23, s{w}, 1\ns_add_u32 s65, s65, s23\ns_and_b32 s29, s{TAB+1}, 3")
    k(f"s_cmp_eq_u32 s{TAB}, {K_G}\ns_cbranch_scc1 {lg}\ns_cmp_eq_u32 s{TAB}, {K_V}\ns_cbranch_scc1 {lv}")
    for vt in (False, True):
        if vt:
            k.label(lv)
            k(f"s_movk_i32 s43, 2560\ns_mov_b32 s66, {WS_KV + 1280}\ns_mov_b32 s67, 1\ns_mov_b32 s64, {64*2560}\ns_mov_b32 s42, {64*2560-640}")
            k("v_and_b32 v3, 3, v1\nv_lshlrev_b32 v3, 4, v3\nv_lshl_add_u32 v3, v2, 6, v3\nv_lshrrev_b32 v58, 2, v1")
            for u in range(5):
                k(f"v_add_u32 v56, {8*u}, v58\nv_mul_u32_u24 v57, 205, v56\nv_lshrrev_b32 v57, 10, v57\nv_lshl_add_u32 v56, v56, 7, v3\nv_mad_u32_u24 v{EAV[u]}, v57, s42, v56")
        else:
            k(f"""s_mov_b32 s64, {64*1280}
            s_mov_b32 s42, {f32hex(QSCALE)}
            s_movk_i32 s43, 1280
            s_mov_b32 s66, {WS_QF}
            s_cmp_ge_u32 s{TAB+1}, 4
            s_cselect_b32 s64, {64*2560}, s64
            s_cselect_b32 s42, 1.0, s42
            s_cselect_b32 s43, 2560, s43
            s_cselect_b32 s66, {WS_KV}, s66
            s_cselect_b32 s67, 2, 0
            s_cselect_b64 vcc, -1, 0
            v_and_b32 v3, 0x13, v1
            v_and_b32 v56, 4, v1
            v_lshl_or_b32 v3, v56, 1, v3
            v_bfe_u32 v56, v1, 3, 1
            v_lshl_or_b32 v3, v56, 2, v3
            v_cndmask_b32 v3, v1, v3, vcc
            v_lshlrev_b32 v9, 4, v3
            v_lshl_add_u32 v9, v2, 9, v9
            v_lshlrev_b32 v3, 3, v3
            v_mad_u32_u24 v10, v2, s64, v3""")
        k(f"s_lshl_b32 s29, s29, 3\ns_mul_i32 s29, s29, s64\ns_add_u32 s66, s66, s29")
        for i in range(2):
            k(f"s_add_u32 s28, s65, {i}\ns_sub_u32 s29, s28, s67\ns_and_b32 s29, s29, 31\ns_and_b32 s28, s28, 32\ns_or_b32 s28, s28, s29\ns_mul_i32 s28, s28, s43\ns_add_u32 s{76+i}, s28, s66")
        k("s_barrier")
        stamp(k, 1)
        k("s_waitcnt lgkmcnt(0)")
        gemm_loop(k, False, vt, 9)
        stamp(k, 2)
        XK = [16, 24, 224, 232]; WB = [52, 240]
        wfr = lambda u, kk: 32 + 4 * u if kk == 0 else WB[u & 1] + 4 * (kk - 1)
        wrd = lambda u: [f"ds_read_b64_tr_b16 {vr(wfr(u,kk)+2*jj,2)}, v{WA} offset:{(16*kk+4*jj)*320 + 64*u}" for kk in (1, 2, 3) for jj in range(2)]
        xrd = [f"ds_read_b128 {vr(XK[kk]+4*i,4)}, v{XA[kk]} offset:{4096*i}" for kk in (1, 2, 3) for i in range(2)]
        items = []
        if vt:
            for u in range(5):
                for i in range(2):
                    for h in range(2):
                        a = ACC + 16 * (u * 2 + i) + 8 * h
                        items.append((u, [f"v_cvt_pk_bf16_f32 v{a+e}, v{a+2*e}, v{a+2*e+1}" for e in range(4)]
                                      + [f"buffer_store_dwordx4 {vr(a,4)}, v{EAV[u]}, {ws}, s{76+i} offen offset:{640*h} {SC}"]))
        else:
            for m in range(4):
                for qs in ((0, 1), (2,), (3, 4)):
                    for i in range(2):
                        quad = lambda Q: ACC + 16 * ((Q >> 2) * 2 + i) + 4 * (Q & 3)
                        t = quad(5 * m + qs[0]); L = []
                        for x, Q in enumerate(qs):
                            a = quad(5 * m + Q)
                            L += [f"v_pk_mul_f32 {vr(a+e,2)}, {vr(a+e,2)}, s[42:43] op_sel_hi:[1,0]" for e in (0, 2)]
                            L += [f"v_cvt_pk_bf16_f32 v{t+2*x}, v{a}, v{a+1}", f"v_cvt_pk_bf16_f32 v{t+2*x+1}, v{a+2}, v{a+3}"]
                        if len(qs) == 1: L.append(f"buffer_store_dwordx2 {vr(t,2)}, v10, {ws}, s{76+i} offen offset:1024 {SC}\ns_add_u32 s{76+i}, s{76+i}, s64")
                        else: L.append(f"buffer_store_dwordx4 {vr(t,4)}, v9, {ws}, s{76+i} offen {SC}" + (f"\ns_add_u32 s{76+i}, s{76+i}, s64" if qs[0] == 3 else ""))
                        items.append(((5 * m + qs[-1]) >> 2, L))
        if OPT.get('stamp'): k("s_waitcnt lgkmcnt(0)")
        dq = DsQ(k, [("x", 0)] * 2 + [("w", u, 0) for u in range(5) for _ in range(2)])
        dq.wait([("x", 0), ("w", 0, 0)])
        r0 = wrd(0)
        for n in range(3):
            for t in xrd[2*n:2*n+2]: dq.issue(("x", n + 1), t)
            for t in r0[2*n:2*n+2]: dq.issue(("w", 0, n + 1), t)
            if n == 0: dq.wait([("w", 4, 0)])
        for u in range(5):
            pend = [(("w", u + 1, 1 + n // 2), t) for n, t in enumerate(wrd(u + 1))] if u < 4 else []
            todo = []
            while items and items[0][0] < u: todo += items.pop(0)[1]
            for kk in range(4):
                dq.wait([("x", kk), ("w", u, kk)])
                for i in range(2):
                    a, b = vr(wfr(u, kk), 4), vr(XK[kk] + 4*i, 4)
                    if vt: a, b = b, a
                    A_ = vr(ACC + 16 * (u * 2 + i), 16)
                    k(f"v_mfma_f32_32x32x16_bf16 {A_}, {a}, {b}, {A_}")
                    m_ = 2 * kk + i
                    if pend: dq.issue(*pend.pop(0))
                    if m_ == 1 and todo: k("s_nop 7")
                    if m_ >= 1:
                        n = -(-len(todo) // (8 - m_))
                        k("\n".join(todo[:n])); todo = todo[n:]
            assert not pend and not todo
        k("s_nop 10")
        for it in items: k("\n".join(it[1]))
        k(f"s_branch {qd}")
    k.label(lg)
    k(f"s_mov_b32 s{SW}, s{P_GW}\ns_mov_b32 s{SW+1}, s{P_GW+1}\ns_mov_b32 s{SW+2}, {SZ['gw']}\ns_mov_b32 m0, {GLDS}\nv_lshlrev_b32 v3, 4, v0\nv_lshlrev_b32 v{WA}, 4, v2\nv_add_u32 v{WA}, {GLDS}, v{WA}")
    k(f"buffer_load_dwordx4 v3, {sr(SW,4)}, 0 offen lds\nbuffer_load_dwordx4 v3, {sr(SW,4)}, 0 offen offset:1024 lds")
    k(f"s_mov_b32 s{S_CNT}, 10\ns_mov_b32 s{S_SLOT}, 0\ns_waitcnt vmcnt(0) lgkmcnt(0)\ns_barrier")
    l = k.lab("gg"); k.label(l)
    for kk in range(4):
        k(f"ds_read_b128 {vr(16+12*kk,4)}, v{XA[kk]}\nds_read_b128 {vr(20+12*kk,4)}, v{XA[kk]} offset:4096\nds_read_b128 {vr(24+12*kk,4)}, v{WA} offset:{32*kk}")
    k(f"s_add_u32 s{S_SLOT}, s{S_SLOT}, 1\ns_cmp_eq_u32 s{S_SLOT}, 3\ns_cselect_b32 s{S_DELTA}, s70, s71\ns_cselect_b32 s{S_SLOT}, 0, s{S_SLOT}\ns_sub_u32 s{S_CNT}, s{S_CNT}, 1")
    nb = k.lab("nb")
    k(f"s_waitcnt lgkmcnt(0)\ns_cmp_eq_u32 s{S_CNT}, 0\ns_cbranch_scc1 {nb}\ns_barrier")
    k.label(nb)
    for kk in range(4):
        for i in range(2): k(f"v_mfma_f32_32x32x16_bf16 {vr(ACC+16*i,16)}, {vr(24+12*kk,4)}, {vr(16+12*kk+4*i,4)}, {vr(ACC+16*i,16)}")
        k(f"v_add_u32 v{XA[kk]}, s{S_DELTA}, v{XA[kk]}")
    k(f"v_add_u32 v{WA}, 128, v{WA}\ns_cmp_lg_u32 s{S_CNT}, 0\ns_cbranch_scc1 {l}")
    k(f"s_mov_b32 s32, {f32hex(-LOG2E)}\ns_lshl_b32 s28, s65, 7\ns_add_u32 s28, s28, {WS_G}\nv_lshlrev_b32 v3, 2, v1\ns_nop 7")
    for i in range(2):
        a = ACC + 16 * i
        k(f"v_mul_f32 v{a}, s32, v{a}\nv_exp_f32 v{a}, v{a}\ns_nop 0\nv_add_f32 v{a}, 1.0, v{a}\nv_rcp_f32 v{a}, v{a}\ns_nop 0\nbuffer_store_dword v{a}, v3, {ws}, s28 offen offset:{128*i} {SC}")
    k.label(qd)
    stamp(k, 4, 2)
    k("s_waitcnt vmcnt(0)")
    stamp(k, 5, 2)
    k("s_barrier")
    stamp(k, 6, 2)
    pre_epilogue(k)
    k("s_barrier")
    k.label(done)

def spare_wg(k):
    ws = sr(SWS, 4)
    k(f"s_lshl_b32 s22, s{TAB+1}, 3\ns_add_u32 s22, s22, s{S_WAVE}\nv_mov_b32 v12, 0\nv_mov_b32 v13, 1")
    k(f"s_lshl_b32 s24, s22, 9\ns_add_u32 s23, s24, {WS_FH}\ns_lshl_b32 s24, s22, 8\ns_add_u32 s24, s24, {WS_FQ}\nv_lshlrev_b32 v2, 7, v0\ns_mov_b64 exec, 15")
    k(f"buffer_store_dword v12, v2, {ws}, s23 offen sc1\ns_mov_b64 exec, 3\nbuffer_store_dword v12, v2, {ws}, s24 offen sc1\ns_mov_b64 exec, -1")
    k("s_waitcnt vmcnt(0) lgkmcnt(0)\ns_barrier")
    sk = k.lab("na")
    k(f"s_cmp_lg_u32 s{S_WAVE}, 0\ns_cbranch_scc1 {sk}\ns_mov_b64 exec, 1")
    k(f"global_atomic_add v3, v12, v13, {sr(P_DBG,2)} sc0 sc1\ns_waitcnt vmcnt(0)\nv_and_b32 v3, 7, v3\nv_cmp_eq_u32 vcc, 7, v3\ns_nop 1\ns_cmp_eq_u64 vcc, 0\ns_cbranch_scc1 {sk}")
    k(f"global_store_dword v12, v13, {sr(P_DBG,2)} offset:128 sc1")
    k.label(sk)
    k("s_mov_b64 exec, -1")
    if OPT.get('spw', 1):
        k(f"s_mov_b32 s{SW}, s{P_WD}\ns_mov_b32 s{SW+1}, s{P_WD+1}\ns_mov_b32 s{SW+2}, {SZ['wd']}\ns_lshl_b32 s23, s22, 13")
        for n in range(5): k(f"buffer_load_dword v{DUMMY}, v2, {sr(SW,4)}, s23 offen\ns_add_u32 s23, s23, {64*8192}")
        k(f"s_mov_b32 s{SW}, s{P_WO}\ns_mov_b32 s{SW+1}, s{P_WO+1}\ns_mov_b32 s{SW+2}, {SZ['wo']}\ns_lshl_b32 s23, s22, 13")
        for n in range(2): k(f"buffer_load_dword v{DUMMY}, v2, {sr(SW,4)}, s23 offen\ns_add_u32 s23, s23, {64*8192}")
    k(f"v_mov_b32 v4, -1\nv_mov_b32 v5, -1\nv_mov_b32 v6, -1\nv_mov_b32 v7, -1\nv_lshlrev_b32 v8, 4, v0\ns_mul_i32 s23, s22, 40960\ns_add_u32 s23, s23, {WS_OF}\ns_mov_b32 s21, 10")
    lf = k.lab("fill"); k.label(lf)
    for n in range(4): k(f"buffer_store_dwordx4 v[4:7], v8, {ws}, s23 offen offset:{1024*n} sc1")
    k(f"s_add_u32 s23, s23, 4096\ns_sub_u32 s21, s21, 1\ns_cmp_lg_u32 s21, 0\ns_cbranch_scc1 {lf}")
    sk = k.lab("nb")
    k(f"s_waitcnt vmcnt(0)\ns_barrier\ns_cmp_lg_u32 s{S_WAVE}, 0\ns_cbranch_scc1 {sk}\ns_mov_b64 exec, 1")
    k(f"global_atomic_add v3, v12, v13, {sr(P_DBG,2)} offset:8 sc0 sc1\ns_waitcnt vmcnt(0)\nv_and_b32 v3, 7, v3\nv_cmp_eq_u32 vcc, 7, v3\ns_nop 1\ns_cmp_eq_u64 vcc, 0\ns_cbranch_scc1 {sk}")
    k(f"s_mov_b64 exec, 0xff\nv_lshlrev_b32 v3, 12, v0\ns_mov_b32 s23, {WS_FH + 19*128}\nbuffer_store_dword v13, v3, {ws}, s23 offen sc1")
    k.label(sk)
    k("s_mov_b64 exec, -1")
    wait_cleared(k)
```

```python
from fz_a import *
import fz_a

TS = 2608; CH = 8 * TS; RB = 32768
WOB = 98304
MB = RB + 8192
aK16, aK4, aV0, aV1, gL, IDX, GQ, GO = 4, 5, 6, 7, 8, 9, 10, 11
Q16 = [16, 20]; Q4 = [24, 26]
KS = [dict(K16=28, K4=32, V0=36, V1=40), dict(K16=44, K4=34, V0=48, V1=52)]
KT16, KT4 = 56, 60
DS = [56, 76]; DA = [96, 112, 128, 144, 160]; S = [176, 192, 208]; O = [224, 240]
HEAD, QT, KQ, GRP = 4, 5, 6, 7
M32, M20, ONES, K1 = 64, 66, 68, 69
KVB, DLDS, CNT, DSRC = 70, 72, 73, 74
SH0, SH1, SW0, SW2, UA, US, TB0, TB1 = 44, 46, 48, 50, 78, 79, 26, 27
WM0, WM2, WT0, WT2 = 12, 14, 36, 38
LD = "sc1"
ws = sr(SWS, 4)

def kv_dma(src):
    return [f"global_load_lds_dwordx4 v{gL}, {sr(src,2)} {LD}",
            f"global_load_lds_dwordx4 v{gL}, {sr(src,2)} offset:1024 {LD}",
            f"s_mov_b64 exec, {sr(M32,2)}\nglobal_load_lds_dwordx4 v{gL}, {sr(src,2)} offset:2048 {LD}\ns_mov_b64 exec, -1"]
def ptr(r): return f"s_add_u32 s{r}, s{r}, s{P_WS}\ns_addc_u32 s{r+1}, s{P_WS+1}, 0"
def adv(r, n): return f"s_add_u32 s{r}, s{r}, {n}\ns_addc_u32 s{r+1}, s{r+1}, 0"

def attn_early(k):
    k(f"""s_and_b32 s{HEAD}, s2, 7
    s_lshl_b32 s{HEAD}, s{HEAD}, 2
    s_lshr_b32 s23, s2, 6
    s_add_u32 s{HEAD}, s{HEAD}, s23
    s_bfe_u32 s{TB0}, s2, 0x30003
    s_lshl_b32 s{TB0}, s{TB0}, 3
    s_and_b32 s{KQ}, s{S_WAVE}, 3
    s_lshr_b32 s{GRP}, s{S_WAVE}, 2
    s_lshl_b32 s{QT}, s{KQ}, 1
    s_add_u32 s{QT}, s{QT}, s{TB0}
    s_lshr_b32 s23, s{HEAD}, 3
    s_lshl_b32 s23, s23, 1
    s_add_u32 s{TB0}, s{TB0}, s23
    s_and_b32 s23, s{HEAD}, 1
    s_add_u32 s{TB0}, s{TB0}, s23
    s_xor_b32 s{TB1}, s{TB0}, 1
    s_bfe_u32 s{US}, s{HEAD}, 0x20001
    s_mul_i32 s{US}, s{US}, 5
    s_mul_i32 s23, s23, 3
    s_add_u32 s{UA}, s{US}, s23
    s_add_u32 s{US}, s{US}, 2
    s_mul_i32 s{KVB}, s{HEAD}, {64*2560}
    s_add_u32 s{KVB}, s{KVB}, {WS_KV}
    s_lshl_b32 s23, s{GRP}, 5
    s_add_u32 s23, s23, s{KQ}
    s_mul_i32 s{DSRC}, s23, 2560
    s_add_u32 s{DSRC}, s{DSRC}, s{KVB}
    {ptr(DSRC)}
    s_lshl_b32 s28, s{HEAD}, 6
    s_add_u32 s28, s28, s{QT}
    s_mul_i32 s28, s28, 1280
    s_add_u32 s28, s28, {WS_QF}
    s_mul_i32 s{DLDS}, s{S_WAVE}, {TS}
    s_add_u32 s{DLDS}, s{DLDS}, {RB}
    s_lshr_b32 s23, s{KQ}, 1
    s_and_b32 s22, s{KQ}, 1
    s_lshl_b32 s29, s23, 5
    s_add_u32 s29, s29, s22
    s_add_u32 s29, s29, 30
    s_mul_i32 s29, s29, 2560
    s_add_u32 s76, s29, s{KVB}
    {ptr(76)}
    s_lshl_b32 s30, s23, 2
    s_add_u32 s30, s30, s22
    s_mul_i32 s30, s30, {TS}
    s_add_u32 s30, s30, {RB + 2*CH}
    s_mov_b32 s{M32}, -1
    s_mov_b32 s{M32+1}, 0
    s_mov_b32 s{ONES}, 0x3f803f80
    s_mov_b32 s{K1}, 0x00003f80
    v_and_b32 v1, 31, v0
    v_lshrrev_b32 v2, 5, v0
    v_lshlrev_b32 v{gL}, 4, v0""")
    k(f"v_mul_u32_u24 v3, {TS}, v0\nv_mov_b32 v4, s{ONES}\nv_mov_b32 v5, s{ONES}\nv_mov_b32 v6, s{ONES}\nv_mov_b32 v7, s{ONES}\nv_mov_b32 v10, s{ONES}\nv_mov_b32 v11, s{K1}\nv_mov_b32 v12, 0\nv_mov_b32 v13, 0")
    for q in range(2): k(f"v_mov_b32 v{Q4[q]}, 0\nv_mov_b32 v{Q4[q]+1}, 0")
    k(f"s_mov_b64 exec, 0xffffff\nds_write_b128 v3, v[4:7] offset:{RB+2560}\nds_write_b128 v3, v[10:13] offset:{RB+2576}\nds_write_b128 v3, {vr(Q4[0],4)} offset:{RB+2592}\ns_mov_b64 exec, -1")
    k(f"""s_mul_i32 s23, s{GRP}, {4*TS}
    s_add_u32 s23, s23, {RB}
    s_add_u32 s22, s23, 2576
    v_add_u32 v{aK16}, s23, v{gL}
    s_add_u32 s31, s23, 1024
    v_lshl_add_u32 v{aK4}, v1, 3, s31
    v_cmp_eq_u32 vcc, 0, v2
    v_mov_b32 v3, s22
    s_add_u32 s31, s23, 1280
    v_and_b32 v12, 3, v1
    v_cndmask_b32 v{aK4}, v3, v{aK4}, vcc
    v_lshl_add_u32 v12, v12, 4, s31
    v_lshl_add_u32 v12, v2, 6, v12
    v_lshrrev_b32 v13, 2, v1
    v_lshl_add_u32 v{aV0}, v13, 7, v12
    v_cmp_lt_u32 vcc, 20, v1
    v_subrev_u32 v12, 16, v3
    v_add_u32 v13, 16, v3
    v_cndmask_b32 v3, v12, v13, vcc
    v_cmp_gt_u32 vcc, 20, v1
    v_add_u32 v{aV1}, 640, v{aV0}
    v_mov_b32 v{IDX}, 0xdddddddd
    v_cndmask_b32 v{aV0}, v3, v{aV0}, vcc
    v_cndmask_b32 v{aV1}, v3, v{aV1}, vcc
    v_lshlrev_b32 v12, 3, v0
    v_mov_b32 v13, 0""")
    if OPT.get('cpf2', 1):
        k(f"s_lshl_b32 s23, s{S_WAVE}, 13\ns_add_u32 s23, s23, L_main-L_pc0\nv_lshl_add_u32 v3, v0, 7, s23\nv_min_u32 v3, L_tab-L_pc0, v3\nglobal_load_dword v{DUMMY}, v3, s[58:59]")
    np_ = k.lab("np")
    k(f"s_cmp_lg_u32 s{S_WAVE}, 4\ns_cbranch_scc1 {np_}")
    k(f"""s_lshr_b32 s23, s{HEAD}, 3
    s_lshl_b32 s23, s23, 3
    s_bfe_u32 s22, s2, 0x30003
    v_lshrrev_b32 v3, 3, v0
    v_lshlrev_b32 v3, 5, v3
    v_and_b32 v13, 7, v0
    v_add3_u32 v13, v13, v3, 32
    v_add_u32 v13, s23, v13
    s_add_u32 s23, s23, s22
    s_add_u32 s22, s22, 96
    v_writelane_b32 v13, s23, 16
    v_writelane_b32 v13, s22, 17
    s_mov_b32 s23, {WS_FQ}
    v_lshlrev_b32 v13, 7, v13""")
    poll(k, f"buffer_load_dword v3, v13, {ws}, s23 offen sc1", 0x3ffff, OPT.get('slp', 2))
    k.label(np_)
    stamp(k, 8, 2)
    k("s_barrier")
    stamp(k, 9, 2)
    nt = k.lab("nt")
    k(f"s_cmp_eq_u32 s{GRP}, 0\ns_cbranch_scc1 {nt}\ns_mov_b32 m0, s30\ns_nop 0\n" + "\n".join(kv_dma(76)))
    k.label(nt)
    for q in range(2): k(f"buffer_load_dwordx4 {vr(Q16[q],4)}, v{gL}, {ws}, s28 offen offset:{1280*q} {LD}")
    k(f"s_mov_b64 exec, {sr(M32,2)}")
    for q in range(2): k(f"buffer_load_dwordx2 {vr(Q4[q],2)}, v12, {ws}, s28 offen offset:{1280*q+1024} {LD}")
    k(f"s_mov_b64 exec, -1\ns_mov_b32 m0, s{DLDS}\ns_nop 0\n" + "\n".join(kv_dma(DSRC)))

def attn_early2(k):
    sk = k.lab("a2")
    k(f"s_sub_u32 s23, s{TAB}, 1\ns_cmp_lt_u32 s23, 2\ns_cselect_b32 s23, 5, 63\ns_cmp_lg_u32 s{S_WAVE}, s23\ns_cbranch_scc1 {sk}")
    k(f"v_mov_b32 v12, 0\nv_mov_b32 v13, 1\ns_mov_b64 exec, 1\nglobal_atomic_add v{DUMMY}, v12, v13, {sr(P_DBG,2)} offset:4 sc0 sc1\ns_mov_b64 exec, -1\ns_waitcnt vmcnt(8)\ns_branch {sk}_b")
    k.label(sk)
    k(f"s_waitcnt vmcnt(7)\nv_mov_b32 v{DUMMY}, 0")
    k.label(sk + "_b")
    k("s_barrier")

def qk(k, sb, k16, k4, q):
    k(f"v_mfma_f32_32x32x16_bf16 {vr(sb,16)}, {vr(k16,4)}, {vr(Q16[q],4)}, 0")
    k(f"v_mfma_f32_32x32x8_bf16 {vr(sb,16)}, {vr(k4,2)}, {vr(Q4[q],2)}, {vr(sb,16)}")
def rowmax(k, sb, dst, first):
    if first:
        k(f"v_max3_f32 v{dst}, v{sb}, v{sb+1}, v{sb+2}")
        rest = list(range(3, 16)) + [0]
    else:
        rest = list(range(16))
    for i in range(0, len(rest), 2):
        k(f"v_max3_f32 v{dst}, v{dst}, v{sb+rest[i]}, v{sb+rest[i+1]}")
def setpad(k, m, q, a, b, c):
    k(f"v_mov_b32 v{a}, v{m}\ns_nop 1\nv_permlane32_swap_b32 v{m}, v{a}\ns_nop 1\nv_max_f32 v{m}, v{m}, v{a}")
    k(f"""v_xor_b32 v{m}, 0x80000000, v{m}
    v_and_b32 v{a}, 0xffff0000, v{m}
    v_sub_f32 v{b}, v{m}, v{a}
    v_and_b32 v{c}, 0xffff0000, v{b}
    v_sub_f32 v{b}, v{b}, v{c}
    v_lshrrev_b32 v{a}, 16, v{a}
    v_or_b32 v{a}, v{a}, v{c}
    v_lshrrev_b32 v{b}, 16, v{b}""")
    k(f"v_cndmask_b32 v{Q4[q]}, v{a}, v{Q4[q]}, vcc\nv_cndmask_b32 v{Q4[q]+1}, v{b}, v{Q4[q]+1}, vcc")

def kv_reads(st, off):
    return [f"ds_read_b128 {vr(st['V1'],4)}, v{aV1} offset:{off}", f"ds_read_b128 {vr(st['K16'],4)}, v{aK16} offset:{off}",
            f"ds_read_b64 {vr(st['K4'],2)}, v{aK4} offset:{off}", f"ds_read_b128 {vr(st['V0'],4)}, v{aV0} offset:{off}"]

def phase(p, extra_m=(), fill=None):
    t = p >> 1; q = p & 1
    cur, nxt = KS[t & 1], KS[(t + 1) & 1]
    sb = S[p % 3]; sprev = S[(p - 1) % 3]
    v1 = nxt['V1'] if q == 0 else cur['V1']
    pv2 = [f"v_smfmac_f32_32x32x32_bf16 {vr(O[1-q],16)}, {vr(v1,4)}, {vr(sprev+8,8)}, v{IDX}"]
    qk1 = [f"v_mfma_f32_32x32x16_bf16 {vr(sprev,16)}, {vr(cur['K16'],4)}, {vr(Q16[q],4)}, 0"]
    qk2 = [f"v_mfma_f32_32x32x8_bf16 {vr(sprev,16)}, {vr(cur['K4'],2)}, {vr(Q4[q],2)}, {vr(sprev,16)}"]
    pv1 = [f"v_smfmac_f32_32x32x32_bf16 {vr(O[q],16)}, {vr(cur['V0'],4)}, {vr(sb,8)}, v{IDX}"]
    if p >= 62: qk1 = qk2 = []
    if p == 0: pv2 = []
    D = kv_reads(nxt, ((t >> 2) % 3) * CH + (t & 3) * TS) if q == 0 and t < 31 else []
    if t == 30: D = [D[0], D[3]] if D else D
    n = len(extra_m)
    if n == 0: ms, gaps = [pv2, qk1, qk2, pv1], [2, 4, 4, 4, 2]
    elif n == 1: ms, gaps = [pv2, qk1, extra_m[0], qk2, pv1], [2, 3, 3, 3, 4, 1]
    else: ms, gaps = [pv2, extra_m[0], qk1, extra_m[1], qk2, pv1], [2, 2, 3, 3, 2, 3, 1]
    Q.extend(fill or [])
    out = []; e = 0
    for i, g in enumerate(gaps):
        out += [f"v_exp_f32 v{sb+j}, v{sb+j}" for j in range(e, e + g)]; e += g
        if i < len(ms):
            out += [x for x in ms[i] if not (isinstance(x, tuple) and x[0] == 'q')]
            Q.extend([x[1]] for x in ms[i] if isinstance(x, tuple) and x[0] == 'q')
            if D: out.append(D.pop(0))
            for _ in range(len(Q) if p == 63 and i == len(ms) - 1 else min(len(Q), 1)):
                f = Q.pop(0); out += f if isinstance(f, list) else [f]
    return out
Q = []

def resolve(items, pro):
    seq = list(pro); out = []
    for it in items:
        if not isinstance(it, tuple): out.append(it)
        elif it[0] == 'vm': out.append(it[2]); seq.append(it[1])
        else:
            hit = [idx for idx, t in enumerate(seq) if t in it[1]]
            n = len(seq) - 1 - max(hit)
            out.append(f"s_waitcnt vmcnt({min(n, 63)}){it[2]}")
    return out

def wo_src(i):
    s_, u = i // 3, i % 3
    if s_ < 4: return (WM2 if u == 2 else WM0), s_ * 4 * 20480 + (0 if u == 2 else 1024 * u)
    return (WT2 if u == 2 else WT0), (0 if u == 2 else 1024 * u)
def wo_lds(i):
    if i < 4: return 0, 4096, 1024 * i
    if i < 12: return WOB, 8192, 1024 * (i - 4)
    if i < 14: return RB + 2 * CH, 2048, 1024 * (i - 12)
    return RB, 1024, 0

def attn_main(k, end):
    global Q16, Q4
    k.label("L_main")
    stamp(k, 3)
    if OPT.get('stamp'): k("s_waitcnt lgkmcnt(0)")
    k(f"s_mul_i32 s23, s{GRP}, {4*TS}\nv_subrev_u32 v12, s23, v{aK16}\nv_subrev_u32 v13, s23, v{aK4}")
    k(f"ds_read_b128 {vr(KS[1]['K16'],4)}, v12 offset:{2*CH}\nds_read_b64 {vr(KS[1]['K4'],2)}, v13 offset:{2*CH}")
    k(f"ds_read_b128 {vr(KT16,4)}, v{aK16} offset:{2*CH}\nds_read_b64 {vr(KT4,2)}, v{aK4} offset:{2*CH}")
    k("\n".join(kv_reads(KS[0], 2 * CH + TS)))
    k(f"v_mov_b32 v12, 0\nv_mov_b32 v13, 0\nv_cmp_eq_u32 vcc, 0, v2")
    zz = [f"v_mfma_f32_32x32x8_bf16 {vr(b,16)}, v[12:13], v[12:13], 0" for b in O]
    k(f"""s_mul_i32 s23, s{KQ}, 14
    s_mul_i32 s22, s{KQ}, 13
    s_add_u32 s22, s22, 56
    s_cmp_eq_u32 s{GRP}, 0
    s_cselect_b32 s23, s23, s22
    s_add_u32 m0, s{DLDS}, {CH}
    {adv(DSRC, 4*2560)}
    {chr(10).join(kv_dma(DSRC))}
    s_waitcnt vmcnt(6) lgkmcnt(6)""")
    qk(k, S[0], KS[1]['K16'], KS[1]['K4'], 0)
    qk(k, S[1], KS[1]['K16'], KS[1]['K4'], 1)
    k(f"""s_mul_i32 s{SH0}, s{TB0}, 108
    s_add_u32 s{SH0}, s{SH0}, s23
    s_lshl_b32 s{SH0}, s{SH0}, 10
    s_add_u32 s{SH0}, s{SH0}, {WS_HF}
    {ptr(SH0)}
    s_mul_i32 s{SH1}, s{TB1}, 108
    s_add_u32 s{SH1}, s{SH1}, s23
    s_lshl_b32 s{SH1}, s{SH1}, 10
    s_add_u32 s{SH1}, s{SH1}, {WS_HF}
    {ptr(SH1)}""")
    k(zz[0] + "\ns_nop 0")
    rowmax(k, S[0], S[2], True)
    k(zz[1])
    rowmax(k, S[1], S[2]+1, True)
    setpad(k, S[2], 0, S[2]+2, S[2]+3, S[2]+4)
    setpad(k, S[2]+1, 1, S[2]+2, S[2]+3, S[2]+4)
    k("s_waitcnt lgkmcnt(0)\ns_nop 0")
    qk(k, S[0], KT16, KT4, 0)
    qk(k, S[1], KT16, KT4, 1)
    k(f"""s_mul_i32 s23, s23, 20480
    s_add_u32 s23, s23, {WS_WT}
    s_lshl_b32 s22, s{UA}, 10
    s_add_u32 s{SW0}, s23, s22
    s_lshl_b32 s21, s{US}, 10
    s_add_u32 s{SW2}, s23, s21
    s_and_b32 s23, s{S_WAVE}, 1
    s_lshl_b32 s23, s23, 4
    s_lshr_b32 s24, s{S_WAVE}, 1
    s_add_u32 s23, s23, s24
    s_mul_i32 s23, s23, 20480
    s_add_u32 s23, s23, {WS_WT + 108*20480}
    s_add_u32 s{WM0}, s23, s22
    s_add_u32 s{WM2}, s23, s21
    s_mul_i32 s23, s{S_WAVE}, 20480
    s_add_u32 s23, s23, {WS_WT + 140*20480}
    s_add_u32 s{WT0}, s23, s22
    s_add_u32 s{WT2}, s23, s21""")
    for r in (SW0, SW2, WM0, WM2, WT0, WT2): k(ptr(r))
    k(f"""s_lshl_b32 s32, s{TAB+2}, 5
    s_add_u32 s32, s32, s{TAB+1}
    s_lshl_b32 s32, s32, 7
    s_add_u32 s32, s32, {WS_FH}
    s_lshr_b32 s33, s{TB0}, 3
    s_lshl_b32 s33, s33, 12
    s_add_u32 s33, s33, {WS_FH}
    s_add_u32 s42, s{TAB}, s{S_WAVE}
    s_add_u32 s34, s{QT}, s{GRP}
    s_lshl_b32 s34, s34, 7
    s_add_u32 s34, s34, {WS_G}
    s_and_b32 s35, s{TB0}, -2
    s_lshl_b32 s35, s35, 7
    s_add_u32 s35, s35, {WS_G}""")
    k(f"s_lshl_b32 s24, s{S_WAVE}, 10\nv_lshlrev_b32 v14, 7, v0\nv_lshlrev_b32 v3, 2, v1")
    k(f"s_add_u32 s25, s{TAB}, s{GRP}\nv_mov_b32 v13, 1\ns_waitcnt vmcnt(3)")
    stamp(k, 4)
    if OPT.get('stamp'): k("s_waitcnt lgkmcnt(0)")
    P0, P1 = OPT.get('p0', 16), OPT.get('p1', 62)
    NDEF = OPT.get('ndef', 0)
    def loads(n):
        d = DS[n & 1]; L = []
        def vm(r, so, off, step):
            t = f"global_load_dwordx4 {vr(r,4)}, v{gL}, {sr(so,2)} offset:{off} {LD}"
            if n == 13:
                sk = k.lab("sk"); t = f"s_cbranch_scc1 {sk}\n{t}\n{sk}:"
                t = f"s_cmp_eq_u32 s{GRP}, 1\n" + t
            elif step: t += "\n" + adv(so, step)
            L.append(('vm', f"d{n}", t))
        vm(d, SH0, 0, 1024); vm(d + 8, SW0, 0, 0); vm(d + 12, SW0, 1024, 20480); vm(d + 16, SW2, 0, 20480); vm(d + 4, SH1, 0, 1024)
        return L
    mf = []
    for n in range(14):
        d = DS[n & 1]
        for u, (wr_, hr) in enumerate(((8, 0), (12, 0), (16, 0), (8, 4), (12, 4))):
            it = [f"v_mfma_f32_32x32x16_bf16 {vr(DA[u],16)}, {vr(d+wr_,4)}, {vr(d+hr,4)}, {vr(DA[u],16) if n else 0}"]
            if u == 0:
                it = [('wait', [f"d{n}"], "")] + it
                if n < 13: it += [('q', x) for x in loads(n + 1)]
            mf.append(it)
    late = []
    if NDEF == 0:
        for x in range(len(mf) - 5, len(mf)):
            sk = k.lab("sk")
            mf[x] = [y if isinstance(y, tuple) else f"s_cmp_eq_u32 s{GRP}, 1\ns_cbranch_scc1 {sk}\n{y}\n{sk}:" for y in mf[x]]
    if NDEF:
        late = mf[-5*NDEF:]; mf = mf[:-5*NDEF]
        if NDEF == 2:
            late[0] = late[0][:2]; mf[-1] = mf[-1] + [('q', x) for x in loads(13)]
        late = [[x for x in it if not isinstance(x, tuple)] for it in late]
    if OPT.get('nodown'): mf = []
    if OPT.get('nodl'): mf = [[x for x in it if not isinstance(x, tuple)] for it in mf]
    if OPT.get('nodm'): mf = [[x for x in it if isinstance(x, tuple) or 'mfma' not in x] for it in mf]
    if OPT.get('nodw'): mf = [[x for x in it if not (isinstance(x, tuple) and x[0] == 'wait')] for it in mf]
    def wo_dma(i):
        b, off = wo_src(i); lb, st_, lo = wo_lds(i)
        return [('vm', 'wo', f"s_mul_i32 s23, s24, {st_ // 1024}\ns_add_u32 m0, s23, {lb + lo}\ns_add_u32 s22, s{b}, {off}\ns_addc_u32 s23, s{b+1}, 0\nglobal_load_lds_dwordx4 v{gL}, s[22:23] {LD}")]
    items = [".p2align 6"]
    mi = 0
    pl, ok = k.lab("ph"), k.lab("ok")
    for p in range(64):
        c, pp = p >> 3, p & 7
        if p == P0:
            if OPT.get('stamp') == 1: items.append(f"{'s_memrealtime' if OPT.get('rt') else 's_memtime'} s[90:91]\ns_waitcnt lgkmcnt(0)")
            items += [('wait', ['poll'], ""), f"s_mov_b64 exec, 0xfffff\ns_mov_b32 s21, {SPIN}\n{pl}:\nv_cmp_ne_u32 vcc, 1, v12\ns_nop 1\ns_cmp_eq_u64 vcc, 0\ns_cbranch_scc1 {ok}\ns_sleep 4\n"
                      f"buffer_load_dword v12, v14, {ws}, s33 offen sc1\ns_sub_u32 s21, s21, 1\ns_waitcnt vmcnt(0)\ns_cbranch_scc0 {pl}\n{ok}:\ns_mov_b64 exec, -1"]
            Q.extend([x] for x in loads(0))
        if pp == 0:
            if c == 0: items.append("s_waitcnt lgkmcnt(0)")
            elif c == 1: items.append("s_waitcnt vmcnt(0) lgkmcnt(0)")
            else: items.append(('wait', [f"kv{c}"], " lgkmcnt(0)"))
            items.append("s_barrier")
            if c == 1:
                nf = k.lab("nf")
                items += [f"s_cmp_lg_u32 s42, 0\ns_cbranch_scc1 {nf}\ns_mov_b64 exec, 1\nbuffer_store_dword v13, v14, {ws}, s32 offen sc1\ns_mov_b64 exec, -1\n{nf}:"]
                nf = k.lab("nf")
                items += [f"s_cmp_lg_u32 s{S_WAVE}, 5\ns_cbranch_scc1 {nf}\nv_readfirstlane_b32 s23, v{DUMMY}\ns_nop 0\ns_mul_hi_u32 s22, s23, 0x2aaaaab\ns_mul_i32 s22, s22, 96\ns_sub_u32 s23, s23, s22\ns_mov_b32 s22, {WS_FH + 18*128}\ns_cmp_lg_u32 s23, 95\ns_cbranch_scc1 {nf}\n"
                          f"v_lshlrev_b32 v12, 12, v0\ns_mov_b64 exec, 0xff\nbuffer_store_dword v13, v12, {ws}, s22 offen sc1\ns_mov_b64 exec, -1\n{nf}:"]
        elif pp % 2 == 0: items.append("s_waitcnt lgkmcnt(0)")
        if pp % 2 == 0 and not OPT.get('nopr'): items.append(f"s_setprio {3 - pp//2}")
        fill = []
        if pp == 1 and c < 6:
            d = kv_dma(DSRC)
            fill = [[('vm', f"kv{c+2}", f"s_add_u32 m0, s{DLDS}, {((c+2) % 3)*CH}\n{adv(DSRC, 4*2560)}\n" + d[0])], [('vm', f"kv{c+2}", d[1])], [('vm', f"kv{c+2}", d[2])]]
        if pp == 1 and c == 6: fill = [wo_dma(12), wo_dma(13)]
        if pp == 1 and c == 7: fill = [wo_dma(14)]
        if 2 <= c < 6 and pp in (3, 5, 7) and not OPT.get('nowo'): fill.append(wo_dma(3 * (c - 2) + (pp - 3) // 2))
        h0 = OPT.get('h0', 1)
        if h0 <= p < h0 + 4:
            i_ = p - h0
            for j_ in range(3):
                nh = k.lab("nh")
                fill.append(f"s_cmp_lg_u32 s25, 0\ns_cbranch_scc1 {nh}\nbuffer_store_dwordx4 {vr(64+16*j_+4*i_,4)}, v{gL}, {ws}, s43 offen offset:{1024*j_} sc1"
                            + (f"\ns_add_u32 s43, s43, {108*1024}" if j_ == 2 else "") + f"\n{nh}:")
        if p == OPT.get('cpf3', 48):
            fill.append([('vm', 'x', f"s_and_b32 s23, s{S_WAVE}, 1\ns_lshl_b32 s23, s23, 13\ns_add_u32 s23, s23, L_tail-L_pc0\nv_lshl_add_u32 v3, v0, 7, s23\nv_min_u32 v3, L_tab-L_pc0, v3\nglobal_load_dword v13, v3, s[58:59]")])
        if p == P0 - 3: fill.append([('vm', 'poll', f"s_mov_b64 exec, 0xfffff\nbuffer_load_dword v12, v14, {ws}, s33 offen sc1\ns_mov_b64 exec, -1")])
        if p == 9: fill.append([('vm', 'g', f"buffer_load_dword v{GQ}, v3, {ws}, s34 offen {LD}"), ('vm', 'g', f"v_lshlrev_b32 v3, 2, v0\nbuffer_load_dword v{GO}, v3, {ws}, s35 offen {LD}")])
        nm = 0
        if P0 + 2 <= p < P1:
            a, b = p - P0 - 2, P1 - P0 - 2
            nm = (len(mf) * (a + 1)) // b - (len(mf) * a) // b
        items += phase(p, mf[mi:mi + nm], fill); mi += nm
    assert mi == len(mf)
    k("\n".join(resolve(items, [])))
    k.label("L_tail")
    stamp(k, 6); stamp(k, 1, 3)
    k(f"s_setprio 0\ns_mul_i32 s28, s{S_WAVE}, 3072\ns_xor_b32 s29, s{S_WAVE}, 4\ns_mul_i32 s29, s29, 3072")
    k(f"v_smfmac_f32_32x32x32_bf16 {vr(O[1],16)}, {vr(KS[1]['V1'],4)}, {vr(S[63 % 3]+8,8)}, v{IDX}")
    k(f"s_mov_b32 s{SX}, s{P_OUT}\ns_mov_b32 s{SX+1}, s{P_OUT+1}")
    k(f"s_cmp_eq_u32 s{GRP}, 0\ns_cselect_b32 s22, s{TB0}, s{TB1}\ns_mul_i32 s53, s22, 40960\ns_add_u32 s53, s53, {WS_OF}\ns_lshl_b32 s23, s{KQ}, 11\ns_add_u32 s52, s53, s23\ns_add_u32 s52, s52, 32768\ns_lshl_b32 s23, s{KQ}, 10\ns_add_u32 s44, s53, s23")
    k(f"""v_lshlrev_b32 v14, 12, v0
    s_add_u32 s23, s44, 1020
    v_add_u32 v14, s23, v14
    v_lshlrev_b32 v13, 8, v0
    s_sub_u32 s23, s52, {8*256 - 252}
    v_cmp_gt_u32 vcc, 8, v0
    v_add_u32 v13, s23, v13
    s_nop 0
    v_cndmask_b32 v14, v13, v14, vcc
    s_mov_b64 exec, 0xffff
    buffer_load_dword v4, v14, {ws}, 0 offen sc1
    s_mov_b64 exec, -1""")
    for j in range(1, 8): k(f"s_add_u32 s{44+j}, s44, {4096*j}")
    k(f"v_lshlrev_b32 v15, 3, v1\nv_lshl_add_u32 v15, v2, 9, v15")
    k(f"v_add_u32 v12, s28, v{gL}\nv_add_u32 v13, s29, v{gL}")
    k("s_barrier")
    stamp(k, 2, 3)
    h1 = k.lab("h1"); hj = k.lab("hj")
    k(f"s_cmp_eq_u32 s{GRP}, 1\ns_nop 6\ns_cbranch_scc1 {h1}")
    for i in range(3): k(f"ds_write_b128 v12, {vr(O[1]+4*i,4)} offset:{MB+1024*i}")
    k(f"s_branch {hj}")
    k.label(h1)
    for i in range(3): k(f"ds_write_b128 v12, {vr(O[0]+4*i,4)} offset:{MB+1024*i}")
    k("s_nop 1")
    for i in range(0, 12, 2): k(f"v_pk_mov_b32 {vr(O[0]+i,2)}, {vr(O[1]+i,2)}, {vr(O[1]+i,2)} op_sel:[0,1]")
    k.label(hj)
    k(f"s_add_u32 s{QT}, s{QT}, s{GRP}\ns_mul_i32 s28, s{QT}, 40960\ns_add_u32 s28, s28, {WS_OF}\ns_lshl_b32 s29, s{HEAD}, 8\ns_add_u32 s29, s29, s28\ns_add_u32 s29, s29, 32768\ns_lshl_b32 s23, s{HEAD}, 10\ns_add_u32 s28, s28, s23")
    k("s_mov_b32 s30, 0x5f800000\nv_lshlrev_b32 v3, 3, v0\ns_waitcnt vmcnt(1) lgkmcnt(0)\ns_barrier")
    stamp(k, 3, 3)
    OO = O[0]; X = S[0]
    for i in range(3): k(f"ds_read_b128 {vr(X+4*i,4)}, v13 offset:{MB+1024*i}")
    k("s_waitcnt lgkmcnt(0)")
    for i in range(0, 12, 2): k(f"v_pk_add_f32 {vr(OO+i,2)}, {vr(OO+i,2)}, {vr(X+i,2)}")
    norm = k.lab("norm"); slow = k.lab("slow")
    def getl():
        k(f"v_mov_b32 v12, v{OO+8}\nv_mov_b32 v13, v{OO+8}\ns_nop 1\nv_permlane32_swap_b32 v12, v13\ns_nop 1")
    getl()
    if OPT.get('slow'): k(f"s_branch {slow}")
    k(f"v_cmp_nle_f32 vcc, v13, s30\ns_nop 1\ns_cmp_lg_u64 vcc, 0\ns_cbranch_scc1 {slow}")
    k.label(norm)
    k(f"v_rcp_f32 v12, v13\ns_nop 0\nv_mul_f32 v12, v12, v{GQ}")
    for i in range(0, 12, 2): k(f"v_pk_mul_f32 {vr(OO+i,2)}, {vr(OO+i,2)}, v[12:13] op_sel_hi:[1,0]")
    for i in range(6): k(f"v_cvt_pk_bf16_f32 v{X+i}, v{OO+2*i}, v{OO+2*i+1}")
    for i in range(6): k(f"v_min_u32 v{X+i}, -2, v{X+i}")
    k(f"buffer_store_dwordx4 {vr(X,4)}, v{gL}, {ws}, s28 offen sc1")
    k(f"s_mov_b64 exec, {sr(M32,2)}\nbuffer_store_dwordx2 {vr(X+4,2)}, v3, {ws}, s29 offen sc1\ns_mov_b64 exec, -1")
    stamp(k, 7); stamp(k, 4, 3)
    k(f"s_waitcnt vmcnt(2)\ns_mov_b64 exec, 0xffff\n{decode(4)}\ns_mov_b32 s{NEW}, s22\ns_mov_b32 s{DONE}, 0")
    out_proj(k, late)
    if OPT.get('stamp'): stamps_out(k, 11)
    k.label(end)
    k("s_endpgm")
    k.label(slow)
    T1 = S[1] + 8
    Q16s, Q4s = Q16, Q4
    Q16, Q4 = [S[1]], [S[1] + 4]
    st = dict(K16=O[1], K4=S[1]+6, V0=O[1]+4, V1=O[1]+8)
    k(f"s_lshl_b32 s22, s{HEAD}, 6\ns_add_u32 s22, s22, s{QT}\ns_mul_i32 s22, s22, 1280\ns_add_u32 s22, s22, {WS_QF}")
    k(f"buffer_load_dwordx4 {vr(Q16[0],4)}, v{gL}, {ws}, s22 offen {LD}\nbuffer_load_dwordx2 {vr(Q4[0],2)}, v3, {ws}, s22 offen offset:1024 {LD}\ns_waitcnt vmcnt(0)")
    k(f"s_mov_b32 s{M20}, 0x000fffff\ns_mov_b32 s{M20+1}, 0x000fffff\nv_and_b32 v12, 3, v1\nv_lshlrev_b32 v12, 4, v12\nv_lshl_add_u32 v12, v2, 6, v12\nv_lshrrev_b32 v{T1}, 2, v1\nv_lshl_add_u32 v{T1}, v{T1}, 7, v12")
    k(f"v_cmp_eq_u32 vcc, 0, v2\nv_mov_b32 v12, 0\ns_nop 1\nv_cndmask_b32 v{Q4[0]}, v12, v{Q4[0]}, vcc\nv_cndmask_b32 v{Q4[0]+1}, v12, v{Q4[0]+1}, vcc")
    k(f"v_mov_b32 v{st['K4']}, s{ONES}\nv_mov_b32 v{st['K4']+1}, s{K1}")
    for i in range(4): k(f"v_mov_b32 v{st['V0']+i}, s{ONES}\nv_mov_b32 v{st['V1']+i}, s{ONES}")
    k(f"v_mov_b32 v{S[2]}, 0xff800000\ns_mov_b32 s{CNT}, 0")
    def pk(dst, skew):
        k(f"s_sub_u32 s{dst}, s{CNT}, {skew}\ns_and_b32 s{dst}, s{dst}, 31\ns_and_b32 s23, s{CNT}, 32\ns_or_b32 s{dst}, s{dst}, s23\ns_mul_i32 s{dst}, s{dst}, 2560\ns_add_u32 s{dst}, s{dst}, s{KVB}")
    def ldk():
        pk(22, 2)
        k(f"buffer_load_dwordx4 {vr(st['K16'],4)}, v{gL}, {ws}, s22 offen {LD}")
        k(f"s_mov_b64 exec, {sr(M32,2)}\nbuffer_load_dwordx2 {vr(st['K4'],2)}, v3, {ws}, s22 offen offset:1024 {LD}\ns_mov_b64 exec, -1")
    l1 = k.lab("p1"); k.label(l1)
    ldk()
    k("s_waitcnt vmcnt(0)")
    qk(k, S[0], st['K16'], st['K4'], 0)
    k("s_nop 11")
    rowmax(k, S[0], S[2], False)
    k(f"s_add_u32 s{CNT}, s{CNT}, 1\ns_cmp_lg_u32 s{CNT}, 64\ns_cbranch_scc1 {l1}")
    setpad(k, S[2], 0, S[2]+2, S[2]+3, S[2]+4)
    for i in range(16): k(f"v_mov_b32 v{OO+i}, 0")
    k(f"s_mov_b32 s{CNT}, 0")
    l2 = k.lab("p2"); k.label(l2)
    ldk()
    pk(21, 1)
    k(f"s_mov_b64 exec, {sr(M20,2)}")
    k(f"buffer_load_dwordx4 {vr(st['V0'],4)}, v{T1}, {ws}, s21 offen offset:1280 {LD}")
    k(f"buffer_load_dwordx4 {vr(st['V1'],4)}, v{T1}, {ws}, s21 offen offset:1920 {LD}")
    k("s_mov_b64 exec, -1\ns_waitcnt vmcnt(0)")
    qk(k, S[0], st['K16'], st['K4'], 0)
    k("s_nop 11")
    for i in range(16): k(f"v_exp_f32 v{S[0]+i}, v{S[0]+i}")
    k("s_nop 1")
    k(f"v_smfmac_f32_32x32x32_bf16 {vr(OO,16)}, {vr(st['V0'],4)}, {vr(S[0],8)}, v{IDX}")
    k(f"v_smfmac_f32_32x32x32_bf16 {vr(OO,16)}, {vr(st['V1'],4)}, {vr(S[0]+8,8)}, v{IDX}")
    k(f"s_add_u32 s{CNT}, s{CNT}, 1\ns_cmp_lg_u32 s{CNT}, 64\ns_cbranch_scc1 {l2}")
    k("s_nop 11")
    getl()
    k(f"s_branch {norm}")
    Q16, Q4 = Q16s, Q4s

OFR = 16
DONE, NEW = 53, 31
def decode(reg):
    return f"""v_cmp_ne_u32 vcc, -1, v{reg}
    s_mov_b64 exec, -1
    s_bfe_u32 s22, vcc_lo, 0x40008
    s_cmp_eq_u32 s22, 15
    s_cselect_b32 s22, 0x100, 0
    s_bfe_u32 s23, vcc_lo, 0x4000c
    s_cmp_eq_u32 s23, 15
    s_cselect_b32 s23, 0x200, 0
    s_or_b32 s22, s22, s23
    s_and_b32 s23, vcc_lo, 0xff
    s_or_b32 s22, s22, s23"""
def oloads(k, js=range(10)):
    for j in js:
        sk = k.lab("sk")
        k(f"s_bitcmp0_b32 s{NEW}, {j}\ns_cbranch_scc1 {sk} ; one")
        if j < 8: k(f"buffer_load_dwordx4 {vr(OFR+4*j,4)}, v{gL}, {ws}, s{44+j} offen {LD}")
        else:
            for h in range(2): k(f"buffer_load_dwordx2 {vr(OFR+4*j+2*h,2)}, v15, {ws}, s52 offen offset:{1024*(j-8)+256*h} {LD}")
        k.label(sk)

def out_proj(k, late):
    WR = [176 + 4 * i for i in range(20)] + [56 + 4 * i for i in range(10)]
    QS = 1024; US_ = 4 * QS
    for n, (b, st_) in enumerate(((0, 4096), (WOB, 8192), (RB + 2 * CH, 2048), (RB, 1024))):
        k(f"s_mul_i32 s23, s{KQ}, {2*st_}\ns_add_u32 s23, s23, {b}\nv_add_u32 v{4+n}, s23, v{gL}")
    for n, it in enumerate(late):
        if n == len(late) - 5 and late: sk = k.lab("sk"); k(f"s_cmp_eq_u32 s{GRP}, 1\ns_cbranch_scc1 {sk}")
        k("\n".join(it))
    if late: k.label(sk)
    k(f"v_sub_f32 v12, 1.0, v{GO}\nv_sub_f32 v13, 1.0, v{GO}\ns_mov_b32 s21, {SPIN}\ns_bitcmp1_b32 s{TB0}, 0\nv_permlane32_swap_b32 v12, v13\ns_cselect_b64 vcc, -1, 0")
    k(f"s_nop 0\nv_cndmask_b32 v{GO}, v12, v13, vcc\nv_cndmask_b32 v12, v13, v12, vcc")
    g1, fin = k.lab("o1"), k.lab("of")
    k(f"s_mul_i32 s24, s{S_WAVE}, {US_}\ns_cmp_eq_u32 s{GRP}, 1\ns_cbranch_scc1 {g1}")
    for g in range(2):
        if g: k.label(g1)
        nu = 3 - g
        keep = [0, 1, 2] if g == 0 else [3, 4]; give = [3, 4] if g == 0 else [0, 1, 2]
        wreg = {}; n = 0; rd = []
        for e in range(2):
            for s_ in range(5):
                for u in range(nu):
                    i = 3 * s_ + u
                    lb, st_, lo = wo_lds(i)
                    ar = {0: 4, WOB: 5, RB + 2 * CH: 6, RB: 7}[lb]
                    wreg[e, s_, u] = WR[n]
                    rd.append(f"ds_read_b128 {vr(WR[n],4)}, v{ar} offset:{e*st_ + lo}"); n += 1
        sc = [f"v_pk_mul_f32 {vr(DA[u]+i,2)}, {vr(DA[u]+i,2)}, {'v[10:11] op_sel:[0,1]' if u < 3 else 'v[12:13] op_sel_hi:[1,0]'}" for u in give + keep for i in range(0, 16, 2)]
        for n, r in enumerate(rd):
            if n % nu == 0: oloads(k, [n // nu])
            k(r)
            k("\n".join(sc[(40 * n) // len(rd):(40 * (n + 1)) // len(rd)]))
            if n % 8 == 7: k("s_waitcnt lgkmcnt(4)")
        k("s_waitcnt lgkmcnt(0)")
        base = [give[0] // 2]
        k(f"s_add_u32 s24, s24, {base[0]*65536}")
        for q in range(4): k(f"v_xor_b32 v{4+q}, {64*q}, v{gL}\nv_add_u32 v{4+q}, s24, v{4+q}")
        k("s_barrier")
        stamp(k, 8); stamp(k, 5, 3)
        def pw(u):
            L = []
            if u // 2 != base[0]:
                L = [f"v_add_u32 v{4+q}, {((u//2 - base[0])*65536) & 0xffffffff}, v{4+q}" for q in range(4)]; base[0] = u // 2
            return L + [f"ds_write_b128 v{4+q}, {vr(DA[u]+4*q,4)} offset:{(u % 2)*8*US_ + QS*q}" for q in range(4)]
        for u in give: k("\n".join(pw(u)))
        stamp(k, 9); stamp(k, 7, 3)
        lp, ex, nl = k.lab("lp"), k.lab("ex"), k.lab("nl")
        OK = 30
        order = [(0, s_) for s_ in range(4)] + [(1, s_) for s_ in range(4)] + [(0, 4), (1, 4)]
        k.label(lp)
        k(f"s_sub_u32 s21, s21, 1\ns_cbranch_scc1 {ex}\ns_mov_b32 s{OK}, 0\ns_waitcnt vmcnt(0)")
        for j in range(10):
            r = OFR + 4 * j; sk = k.lab("sk")
            k(f"s_bitcmp0_b32 s{NEW}, {j}\ns_cbranch_scc1 {sk} ; one\nv_max3_u32 v13, v{r}, v{r+1}, v{r+2}\nv_max_u32 v13, v13, v{r+3}\nv_cmp_eq_u32 vcc, -1, v13\ns_cbranch_vccnz {sk} ; one\ns_bitset1_b32 s{OK}, {j}\n{sk}:")
        k(f"s_or_b32 s{DONE}, s{DONE}, s{OK}\ns_andn2_b32 s{NEW}, 0x3ff, s{DONE}\ns_cbranch_scc0 {nl}")
        oloads(k)
        k.label(nl)
        for j, (e, s_) in enumerate(order):
            sk = k.lab("sk"); r = OFR + 4 * j
            k(f"s_bitcmp0_b32 s{OK}, {j}\ns_cbranch_scc1 {sk} ; one")
            for x, u in enumerate(keep):
                k(f"v_mfma_f32_32x32x16_bf16 {vr(DA[u],16)}, {vr(wreg[e,s_,x],4)}, {vr(r,4)}, {vr(DA[u],16)} ; nowait")
            k.label(sk)
        k(f"s_cmp_lg_u32 s{NEW}, 0\ns_cbranch_scc1 {lp}")
        k.label(ex)
        stamp(k, 8, 3)
        k(f"s_waitcnt vmcnt(0)\ns_nop 8")
        for u in keep: k("\n".join(pw(u)))
        if g == 0: k(f"s_branch {fin}")
    k.label(fin)
    R = 16
    k(f"""v_and_b32 v3, 3, v0
    v_lshrrev_b32 v4, 2, v0
    v_lshlrev_b32 v5, 2, v3
    v_xor_b32 v5, v5, v4
    v_lshlrev_b32 v5, 4, v5
    v_lshl_add_u32 v5, v3, 10, v5
    v_mul_u32_u24 v7, 1280, v4
    v_lshl_add_u32 v7, v3, 4, v7
    s_mov_b32 s22, s{S_WAVE}
    s_waitcnt lgkmcnt(0)
    s_barrier""")
    stamp(k, 9, 3)
    if OPT.get('stamp') == 3: k("s_waitcnt lgkmcnt(0)")
    it = k.lab("it"); k.label(it)
    k(f"s_lshr_b32 s23, s22, 1\ns_and_b32 s24, s22, 1\ns_mul_i32 s25, s23, {8*US_}\ns_lshl_b32 s28, s24, 8\ns_add_u32 s25, s25, s28\nv_add_u32 v6, s25, v5")
    for w_ in range(8):
        for hb in range(2): k(f"ds_read_b128 {vr(R+8*w_+4*hb,4)}, v6 offset:{w_*US_ + 512*hb}")
        if w_ == 5: k("s_waitcnt lgkmcnt(8)")
    k(f"""s_cmp_ge_u32 s23, 3
    s_cselect_b32 s28, s{TB1}, s{TB0}
    s_cselect_b32 s29, 3, 0
    s_sub_u32 s29, s23, s29
    s_add_u32 s29, s29, s{UA}
    s_cmp_eq_u32 s23, 2
    s_cselect_b32 s29, s{US}, s29
    s_lshl_b32 s28, s28, 1
    s_add_u32 s28, s28, s24
    s_mul_i32 s28, s28, {16*1280}
    s_lshl_b32 s29, s29, 6
    s_add_u32 s28, s28, s29""")
    for w_ in range(1, 8):
        if w_ in (1, 2, 4, 6, 7): k(f"s_waitcnt lgkmcnt({ {1: 12, 2: 8, 4: 4, 6: 2, 7: 0}[w_] })")
        for e in range(0, 8, 2): k(f"v_pk_add_f32 {vr(R+e,2)}, {vr(R+e,2)}, {vr(R+8*w_+e,2)}")
    for e in range(4): k(f"v_cvt_pk_bf16_f32 v{R+8+e}, v{R+2*e}, v{R+2*e+1}")
    k(f"buffer_store_dwordx4 {vr(R+8,4)}, v7, {sr(SX,4)}, s28 offen {['', 'sc1', 'nt', 'sc0 sc1', 'sc1 nt'][OPT.get('osc', 0)]}")
    k(f"s_add_u32 s22, s22, 8\ns_cmp_lt_u32 s22, 10\ns_cbranch_scc1 {it}")
```
